```python
import torch

def _softmax(x, axis=-1):
    return torch.softmax(x, dim=axis)
def _gelu(x):
    return torch.nn.functional.gelu(x, approximate="tanh")
def _silu(x):
    return torch.nn.functional.silu(x)
def _sigmoid(x):
    return torch.sigmoid(x)
def _layernorm(x, axis=-1, eps=1e-5):
    m = x.mean(dim=axis, keepdim=True)
    v = x.var(dim=axis, keepdim=True, unbiased=False)
    return (x - m) / torch.sqrt(v + eps)
def _scatter_add(tgt, idx, src, axis=0):
    return tgt.clone().index_add_(axis, idx, src)
def _segment_sum(src, seg, n):
    out = torch.zeros((n,) + src.shape[1:], dtype=src.dtype)
    return out.index_add_(0, seg, src)
def _pad(x, pw):
    flat = tuple(v for pair in reversed(pw) for v in pair)
    return torch.nn.functional.pad(x, flat)

kernel_name = 'parallel_sum__sliding_block_cached__geglu_ffn__decode'

def setup_inputs():

    _w = (lambda a: (lambda t: t.to(torch.bfloat16) if t.is_floating_point() else t)(torch.as_tensor(a)))
    def _A_setup():
        B, Sq, D = 2, 1, 448
        Hq, Hkv, Sk, Dh = 16, 8, 32768, 256
        assert Hq % Hkv == 0, (Hq, Hkv)
        return {
            "x": _w((lambda *s: torch.randn(*s, dtype=torch.bfloat16) * 0.05)(B, Sq, D)),
            "k_cache": _w((lambda *s: torch.randn(*s, dtype=torch.bfloat16) * 3.2)(B, Hkv, Sk, Dh)),
            "v_cache": _w((lambda *s: torch.randn(*s, dtype=torch.bfloat16) * 1.6)(B, Hkv, Sk, Dh)),
            "wq": _w((lambda *s: torch.randn(*s, dtype=torch.bfloat16) * 3.2)(D, Hq * Dh) * (D ** -0.5)),
            "wo": _w((lambda *s: torch.randn(*s, dtype=torch.bfloat16) * 1.6)(Hq * Dh, D) * ((Hq * Dh) ** -0.5)),
        }
    _A_in = _A_setup()

    def _B_setup():
        B, S, D, F = 2, 1, 448, 1792
        return {
            "x": _w((lambda *s: torch.randn(*s, dtype=torch.bfloat16) * 0.05)(B, S, D)),
            "w_gate": _w((lambda *s: torch.randn(*s, dtype=torch.bfloat16) * 0.05)(D, F)),
            "w_up": _w((lambda *s: torch.randn(*s, dtype=torch.bfloat16) * 0.05)(D, F)),
            "w_down": _w((lambda *s: torch.randn(*s, dtype=torch.bfloat16) * 0.05)(F, D)),
        }
    _B_in = _B_setup()

    return {
        "A_x": _A_in["x"],
        "A_k_cache": _A_in["k_cache"],
        "A_v_cache": _A_in["v_cache"],
        "A_wq": _A_in["wq"],
        "A_wo": _A_in["wo"],
        "B_x": _B_in["x"],
        "B_w_gate": _B_in["w_gate"],
        "B_w_up": _B_in["w_up"],
        "B_w_down": _B_in["w_down"],
    }

def reference(A_x, A_k_cache, A_v_cache, A_wq, A_wo, B_x, B_w_gate, B_w_up, B_w_down):
    def _A_ref(x, k_cache, v_cache, wq, wo):
        B, Sq, D = x.shape
        Hq, Dh = 16, 256
        Hkv, Sk = k_cache.shape[1], k_cache.shape[2]
        W = min(4096, max(256, Sk // 4))
        rep = Hq // Hkv
        q = (lambda x, *d: x.permute(*d))((x @ wq).reshape(B, Sq, Hq, Dh), 0, 2, 1, 3)
        k = (lambda x, n, axis: torch.repeat_interleave(x, n, dim=axis))(k_cache[:, :, Sk - W:, :], rep, axis=1)
        v = (lambda x, n, axis: torch.repeat_interleave(x, n, dim=axis))(v_cache[:, :, Sk - W:, :], rep, axis=1)
        scores = torch.einsum("bhqd,bhkd->bhqk", q, k) * (Dh ** -0.5)
        p = _softmax(scores, axis=-1)
        o = torch.einsum("bhqk,bhkd->bhqd", p, v)
        return (lambda x, *d: x.permute(*d))(o, 0, 2, 1, 3).reshape(B, Sq, Hq * Dh) @ wo

    def _B_ref(x, w_gate, w_up, w_down):
        return (_gelu(x @ w_gate) * (x @ w_up)) @ w_down

    x = A_x
    xn = _layernorm(x, axis=-1)
    return x + _A_ref(xn, A_k_cache, A_v_cache, A_wq, A_wo) + _B_ref(xn, B_w_gate, B_w_up, B_w_down)
```

```python
import re
NAME = "parallel_sum__sliding_block_cached__geglu_ffn__decode"

def regs_of(tok):
    tok = tok.strip()
    tok = re.sub(r"^-", "", tok)
    m = re.fullmatch(r"abs\((.*)\)", tok)
    if m: tok = m.group(1)
    m = re.fullmatch(r"([vsa])(\d+)", tok)
    if m: return {(m.group(1), int(m.group(2)))}
    m = re.fullmatch(r"([vsa])\[(\d+):(\d+)\]", tok)
    if m: return {(m.group(1), i) for i in range(int(m.group(2)), int(m.group(3)) + 1)}
    if tok == "vcc": return {("s", 106), ("s", 107)}
    if tok == "vcc_lo": return {("s", 106)}
    if tok == "vcc_hi": return {("s", 107)}
    if tok == "exec": return {("s", 126), ("s", 127)}
    if tok == "exec_lo": return {("s", 126)}
    if tok == "exec_hi": return {("s", 127)}
    if tok == "m0": return {("s", 124)}
    return set()

TRANS = ("v_exp_f32", "v_log_f32", "v_rcp_f32", "v_rsq_f32", "v_sqrt_f32", "v_sin_f32", "v_cos_f32")

class Ins:
    def __init__(self, text):
        self.text = text
        t = text.split(";")[0].strip()
        self.label = t.endswith(":")
        self.op = t.split()[0] if t else ""
        rest = t[len(self.op):].strip()
        ops = [o.strip() for o in re.split(r",(?![^\[]*\])", rest)] if rest else []
        self.mods = ""
        if ops:
            last = ops[-1].split(None, 1)
            ops[-1] = last[0]
            if len(last) > 1: self.mods = last[1]
        self.ops = ops
        op = self.op
        self.is_mfma = op.startswith("v_mfma")
        self.is_valu = op.startswith("v_") and not self.is_mfma
        self.is_dpp = "_dpp" in op or "quad_perm" in self.mods or "row_" in self.mods
        self.is_perml = op.startswith("v_permlane")
        self.is_trans = any(op.startswith(x) for x in TRANS)
        self.is_vmem = op.startswith(("buffer_", "global_", "flat_"))
        self.is_ds = op.startswith("ds_")
        self.is_salu = op.startswith("s_")
        R = [regs_of(o) for o in ops]
        w = set(); r = set()
        self.srcC = set(); self.srcAB = set()
        if self.is_mfma:
            w = R[0]; self.srcAB = R[1] | R[2]; self.srcC = R[3]; r = self.srcAB | self.srcC
        elif self.is_valu:
            if self.is_perml and "swap" in op:
                w = R[0] | R[1]; r = R[0] | R[1]
            elif op.startswith(("v_add_co", "v_sub_co", "v_addc_co", "v_subb_co", "v_div_scale", "v_mad_u64")):
                w = R[0] | R[1]; r = set().union(*R[2:])
            else:
                w = R[0]; r = set().union(*R[1:]) if len(R) > 1 else set()
                if op.startswith(("v_fmac", "v_pk_fmac", "v_writelane", "v_dot2c")) or self.is_dpp and ("row_mask" in self.mods and "row_mask:0xf" not in self.mods or "bank_mask" in self.mods and "bank_mask:0xf" not in self.mods):
                    r |= R[0]
                if op.startswith("v_cndmask") and len(ops) == 3: r |= regs_of("vcc")
                if op.startswith("v_cmpx"): w |= regs_of("exec")
        elif self.is_vmem:
            if "load" in op and "lds" not in self.mods.split():
                w = R[0]; r = set().union(*R[1:])
            elif "atomic" in op and "sc0" in self.mods.split():
                w = R[0]; r = set().union(*R[1:])
            else:
                r = set().union(*R) if R else set()
        elif self.is_ds:
            if op.startswith(("ds_read", "ds_bpermute", "ds_permute", "ds_swizzle")) or "_rtn" in op:
                w = R[0]; r = set().union(*R[1:])
            else:
                r = set().union(*R)
        elif self.is_salu:
            if op.startswith(("s_cmp", "s_cbranch", "s_branch", "s_waitcnt", "s_barrier", "s_nop", "s_endpgm", "s_sleep", "s_setprio", "s_bitcmp")):
                r = set().union(*R) if R else set()
            else:
                w = R[0] if R else set(); r = set().union(*R[1:]) if len(R) > 1 else set()
                if "saveexec" in op: w |= regs_of("exec"); r |= regs_of("exec")
        self.w, self.r = w, r
        self.states = 1
        if op == "s_nop": self.states = int(ops[0]) + 1
        if self.label or not op: self.states = 0
        ndw = 0
        self.wide_store = self.is_vmem and "store" in op and ("x3" in op or "x4" in op)
        if self.wide_store:
            self.sdata = R[0] if op.startswith("buffer") else R[1]

def vonly(s): return {x for x in s if x[0] in "va"}
def sonly(s): return {x for x in s if x[0] == "s"}

def need(p, c):
    n = 0
    if p.is_valu:
        pv = vonly(p.w); ps = sonly(p.w)
        if pv:
            if c.is_mfma and pv & c.r: n = max(n, 2)
            if c.is_valu and c.is_dpp and pv & vonly(c.r): n = max(n, 2)
            if c.is_perml and pv & vonly(c.r): n = max(n, 2)
            if c.op.startswith(("v_readlane", "v_readfirstlane")) and pv & c.r: n = max(n, 1)
            if p.is_trans and c.is_valu and not c.is_trans and pv & c.r: n = max(n, 1)
            if p.is_trans and c.is_mfma and pv & c.r: n = max(n, 2)
            if ("sdwa" in p.op or "op_sel" in p.mods and not p.op.startswith("v_pk")) and c.is_valu and pv & (c.r | c.w): n = max(n, 1)
        if ps:
            if c.is_vmem and ps & c.r: n = max(n, 5)
            if c.is_valu and ps & sonly(c.r): n = max(n, 4 if c.op.startswith(("v_readlane", "v_writelane")) else 2)
            if c.is_salu and ps & c.r: n = max(n, 1)
            if ps & regs_of("exec"):
                if c.is_dpp: n = max(n, 5)
                if c.is_mfma or c.is_perml or c.op.startswith(("v_read", "v_writelane")): n = max(n, 4)
    if p.is_mfma:
        passes = 8 if "32x32" in p.op else 4
        if "16x16x4_f32" in p.op or "16x16x4f32" in p.op: passes = 8
        raw = {4: 8, 8: 12}[passes]
        if c.is_mfma:
            if p.w & c.srcAB: n = max(n, raw)
            if p.w & c.srcC and not (c.srcC == p.w): n = max(n, raw - 2)
            if p.w & c.w and not (c.srcC == p.w): n = max(n, raw - 2)
        elif (c.is_valu or c.is_vmem or c.is_ds) and p.w & (c.r | c.w): n = max(n, raw)
        if c.is_valu and p.srcC & c.w and not (p.srcC & p.w): n = max(n, {4: 3, 8: 7}[passes])
    if p.wide_store and (c.is_valu or c.is_ds or c.is_vmem) and p.sdata & c.w: n = max(n, 2)
    if p.is_salu and ("s", 124) in p.w and c.is_vmem and "lds" in c.mods.split(): n = max(n, 1)
    return n

class Asm:
    def __init__(self): self.L = []
    def __call__(self, text):
        for line in text.strip().split("\n"):
            line = line.strip()
            if not line or line.startswith(";"):
                if line: self.L.append(Ins(line))
                continue
            ins = Ins(line)
            if not ins.label:
                dist = 0; pad = 0
                for p in reversed(self.L):
                    if p.op in ("s_branch", "s_endpgm"): break
                    if dist >= 14: break
                    if p.op and not p.label and not p.text.startswith(";"):
                        k = need(p, ins)
                        if k > dist: pad = max(pad, k - dist)
                        dist += p.states
                if pad:
                    self.L.append(Ins(f"s_nop {pad-1}"))
            self.L.append(ins)
    def label(self, n): self.L.append(Ins(n + ":"))
    def text(self):
        out = []
        for i in self.L:
            out.append(i.text if (i.label or i.text.startswith(";")) else "    " + i.text)
        return "\n".join(out) + "\n"

def header(comment_lines, grid, block, lds):
    s = "".join("; " + c + "\n" for c in comment_lines)
    return s + f"""; @launch grid=({grid},1,1) block=({block},1,1) lds={lds}
.amdgcn_target "amdgcn-amd-amdhsa--gfx950"
.text
.globl {NAME}_kernel
.p2align 8
.type {NAME}_kernel,@function
{NAME}_kernel:
"""
def footer(vgpr, sgpr, accum):
    return f""".section .rodata,"a"
.p2align 6
.amdhsa_kernel {NAME}_kernel
  .amdhsa_next_free_vgpr {vgpr}
  .amdhsa_next_free_sgpr {sgpr}
  .amdhsa_accum_offset {accum}
  .amdhsa_group_segment_fixed_size 0
  .amdhsa_kernarg_size 96
  .amdhsa_user_sgpr_count 2
  .amdhsa_user_sgpr_kernarg_segment_ptr 1
  .amdhsa_system_sgpr_workgroup_id_x 1
  .amdhsa_float_denorm_mode_32 3
.end_amdhsa_kernel
"""
```

```python
import sys, struct
from asmlib import *

def f2u(x): return struct.unpack("<I", struct.pack("<f", x))[0]
def hx(x): return f"0x{x & 0xffffffff:08x}"

WS_EPOCH = 0
GQ  = 0x10000
GF  = 0x18000
GML = 0x20000
GO  = 0x100000
GA  = 0x200000
TS  = 64 << 20
L_XN = 0
L_RED = 4096
L_CNT = 5120
L_Q = 5376
L_ML = 6400
L_WP = 6528
L_HB = 6656
L_OP = 8192
L_AP = 16384
LDS_SIZE = 24576

LOG2E = 1.4426950408889634
C_SC = f2u(LOG2E / 16.0)
C_I448 = f2u(1.0 / 448.0)
C_EPS = f2u(1e-5)

def gen(stamps=False, kflags="nt", wflags="nt", oflags="nt", hashmul=0x9E3779B1, pre_k=0, lag=4, warm=True, prio=True, spin=1 << 17):
    a = Asm()
    nst = [0, 0]
    def stamp(role, i):
        if stamps: a(f"s_memrealtime s[{80+2*i}:{81+2*i}]")
    def lg(n): return f"s_waitcnt lgkmcnt({0 if stamps else n})"
    def poll(name, loads, regs, cnt="s96"):
        a(f"s_mov_b32 {cnt}, 0")
        a("s_mov_b64 s[78:79], exec")
        a.label(f"L_poll_{name}")
        for l in loads: a(l)
        a("s_waitcnt vmcnt(0)")
        first = True
        for r in regs:
            for k in (1, 3):
                if first: a(f"v_cmp_ne_u32 vcc, s33, v{r+k}"); first = False
                else:
                    a(f"v_cmp_ne_u32 s[76:77], s33, v{r+k}")
                    a("s_or_b64 vcc, vcc, s[76:77]")
        a(f"s_cbranch_scc0 L_got_{name}")
        a("s_mov_b64 exec, vcc")
        a(f"s_add_u32 {cnt}, {cnt}, 1")
        a(f"s_cmp_lt_u32 {cnt}, {spin}")
        a(f"s_cbranch_scc1 L_poll_{name}")
        a("s_endpgm")
        a.label(f"L_got_{name}")
        a("s_mov_b64 exec, s[78:79]")
    def allred16(v, op, tmp=None):
        for m in ("quad_perm:[1,0,3,2]", "quad_perm:[2,3,0,1]", "row_half_mirror", "row_mirror"):
            a(f"{op}_dpp {v}, {v}, {v} {m} row_mask:0xf bank_mask:0xf")
    def swapred(vs, tmps, op, which):
        for v, t in zip(vs, tmps): a(f"v_mov_b32 {t}, {v}")
        for v, t in zip(vs, tmps): a(f"v_permlane{which}_swap_b32 {t}, {v}")
        for v, t in zip(vs, tmps): a(f"{op} {v}, {v}, {t}")
    def tag():
        a("s_mul_i32 s33, s33, 0x41C64E6D"); a("s_add_u32 s33, s33, 0x3C6EF35F")

    stamp(0, 0)
    a("""
    s_cmp_ge_u32 s2, 256
    s_cbranch_scc1 L_end
    s_load_dwordx16 s[4:19], s[0:1], 0
    s_load_dwordx8 s[20:27], s[0:1], 64
    v_lshrrev_b32 v2, 6, v0
    v_and_b32 v1, 63, v0
    s_and_b32 s29, s2, 7
    v_readfirstlane_b32 s28, v2
    s_lshr_b32 s30, s2, 3
    s_lshr_b32 s31, s30, 4
    s_and_b32 s32, s30, 15
    s_cmp_ge_u32 s28, 4
    s_cbranch_scc1 L_streamer
    """)
    if prio: a("s_setprio 2")
    a(f"""
    v_mov_b32 v3, {L_CNT}
    v_mov_b32 v4, 0
    ds_write_b32 v3, v4
    v_and_b32 v5, 31, v1
    v_lshrrev_b32 v6, 5, v1
    v_mul_u32_u24 v7, 896, v6
    v_lshl_add_u32 v7, v5, 5, v7
    v_cmp_gt_u32 s[70:71], 28, v5
    v_mov_b32 v8, 0x10000
    s_lshl_b32 s34, s32, 3
    s_add_u32 s34, s34, s29
    s_cmp_ge_u32 s34, 56
    s_cselect_b32 s35, 56, 0
    s_sub_u32 s35, s34, s35            ; tile
    s_lshl_b32 s35, s35, 6
    s_lshl_b32 s72, s29, 10
    s_lshl_b32 s73, s32, 6
    s_add_u32 s72, s72, s73
    v_cndmask_b32 v7, v8, v7, s[70:71]
    s_cmp_eq_u32 s31, 0
    s_cselect_b32 s35, s72, s35
    s_mov_b32 s72, 3584
    s_cselect_b32 s72, 8192, s72
    s_mul_i32 s73, s28, 112
    v_lshrrev_b32 v9, 2, v1
    v_add_u32 v9, s73, v9              ; row
    v_and_b32 v10, 3, v1
    v_lshlrev_b32 v10, 4, v10
    v_mad_u32_u24 v9, v9, s72, v10
    v_add_u32 v9, s35, v9
    s_lshl_b32 s73, s72, 4             ; 16 rows
    s_mov_b32 s52, 0
    """)
    for t in range(1, 7): a(f"s_mul_i32 s{52+t}, s73, {t}")
    a(f"""
    s_cmp_lt_u32 s34, 112
    s_cselect_b32 s74, {448*3584}, 0
    s_cmp_eq_u32 s31, 0
    s_cselect_b32 s42, {448*8192}, s74
    s_mov_b32 s43, 0x20000
    s_mov_b32 s38, 1792
    s_mov_b32 s39, 0x20000
    s_getpc_b64 s[74:75]
L_pc:
    s_sub_u32 s74, s74, L_pc-{NAME}_kernel
    s_subb_u32 s75, s75, 0
    v_lshl_add_u32 v11, s30, 3, v1
    v_lshlrev_b32 v11, 6, v11
    v_min_u32 v11, L_end-{NAME}_kernel, v11
    s_waitcnt lgkmcnt(0)
    s_mov_b32 s36, s4
    s_mov_b32 s37, s5
    buffer_load_dwordx4 v[12:15], v7, s[36:39], 0 offen
    buffer_load_dwordx4 v[16:19], v7, s[36:39], 0 offen offset:16
    s_load_dword s33, s[26:27], {WS_EPOCH}
    s_cmp_ge_u32 s34, 56
    s_cselect_b32 s40, s18, s16
    s_cselect_b32 s41, s19, s17
    s_cmp_eq_u32 s31, 0
    s_cselect_b32 s40, s10, s40
    s_cselect_b32 s41, s11, s41
    """)
    nwarm = 0
    if warm:
        a("s_mov_b64 exec, 0xff")
        a("global_load_dword v100, v11, s[74:75]")
        a("s_mov_b64 exec, -1")
        nwarm = 1
    for t in range(7): a(f"buffer_load_dwordx4 v[{64+4*t}:{67+4*t}], v9, s[40:43], s{52+t} offen {wflags}")
    a("s_barrier   ; B0")
    a("s_branch L_helper2")

    a.label("L_streamer")
    a(f"""
    s_mul_i32 s34, s2, {hx(hashmul)}
    s_lshr_b32 s34, s34, 26            ; h (6 bit)
    s_sub_u32 s28, s28, 4
    s_lshr_b32 s35, s34, 4
    s_xor_b32 s35, s35, s28
    s_lshl_b32 s35, s35, 15
    s_and_b32 s34, s34, 15
    s_lshl_b32 s34, s34, 11
    s_lshl_b32 s72, s31, 3
    s_add_u32 s72, s72, s29
    s_lshl_b32 s72, s72, 24
    s_lshl_b32 s73, s32, 17
    s_add_u32 s72, s72, s73
    s_add_u32 s72, s72, s35
    s_add_u32 s72, s72, {(32768-4096)*512}
    v_bfe_u32 v2, v1, 2, 2
    v_lshlrev_b32 v2, 9, v2
    v_lshrrev_b32 v4, 4, v1            ; g
    v_lshl_add_u32 v2, v4, 6, v2
    v_and_b32 v5, 3, v1
    v_lshl_add_u32 v2, v5, 4, v2
    s_mov_b32 s38, 0x8000
    s_mov_b32 s39, 0x20000
    s_mov_b32 s42, 0x8000
    s_mov_b32 s43, 0x20000
    """)
    for u in range(16): a(f"s_xor_b32 s{52+u}, s34, {u << 11}")
    a(f"""
    s_waitcnt lgkmcnt(0)
    s_add_u32 s36, s6, s72
    s_addc_u32 s37, s7, 0
    s_add_u32 s40, s8, s72
    s_addc_u32 s41, s9, 0
    """)
    KV = 64
    def kload(u, hf): a(f"buffer_load_dwordx4 v[{KV+(u*2+hf)*4}:{KV+(u*2+hf)*4+3}], v2, s[36:39], s{52+u} offen offset:{hf*256} {kflags}")
    def vload(u, hf): a(f"buffer_load_dwordx4 v[{KV+(u*2+hf)*4}:{KV+(u*2+hf)*4+3}], v3, s[40:43], s{52+u} offen offset:{hf*256} {kflags}")
    seq = [(u, hf) for u in range(16) for hf in range(2)]
    for (u, hf) in seq[:pre_k]: kload(u, hf)
    a("s_barrier   ; B0")
    for (u, hf) in seq[pre_k:]: kload(u, hf)
    stamp(1, 1)
    a(f"s_load_dword s33, s[26:27], {WS_EPOCH}")
    a("s_branch L_streamer2")

    a.label("L_helper2")
    X = 20
    a(f"s_waitcnt vmcnt({7+nwarm})")
    stamp(0, 1)
    for k in range(8):
        a(f"v_lshlrev_b32 v{X+2*k}, 16, v{12+k}")
        a(f"v_and_b32 v{X+2*k+1}, 0xffff0000, v{12+k}")
    a(f"v_pk_add_f32 v[36:37], v[{X}:{X+1}], v[{X+2}:{X+3}]")
    a(f"v_pk_add_f32 v[38:39], v[{X+4}:{X+5}], v[{X+6}:{X+7}]")
    a(f"v_pk_add_f32 v[40:41], v[{X+8}:{X+9}], v[{X+10}:{X+11}]")
    a(f"v_pk_add_f32 v[42:43], v[{X+12}:{X+13}], v[{X+14}:{X+15}]")
    a("v_pk_add_f32 v[36:37], v[36:37], v[38:39]")
    a("v_pk_add_f32 v[40:41], v[40:41], v[42:43]")
    a("v_pk_add_f32 v[36:37], v[36:37], v[40:41]")
    a("v_add_f32 v36, v36, v37")
    a(f"s_mov_b32 s72, {hx(C_I448)}"); a(f"s_mov_b32 s73, {hx(f2u(448.0))}")
    allred16("v36", "v_add_f32"); swapred(["v36"], ["v37"], "v_add_f32", 16)
    def div448(v, t1, t2):
        a(f"v_mul_f32 {t1}, s72, {v}"); a(f"v_fma_f32 {t2}, -{t1}, s73, {v}"); a(f"v_fma_f32 {v}, {t2}, s72, {t1}")
    div448("v36", "v38", "v39")
    a("v_cndmask_b32 v38, 0, v36, s[70:71]")
    for k in range(8): a(f"v_pk_add_f32 v[{40+2*k}:{41+2*k}], v[{X+2*k}:{X+2*k+1}], v[38:39] op_sel_hi:[1,0] neg_lo:[0,1] neg_hi:[0,1]")
    a("v_pk_mul_f32 v[56:57], v[40:41], v[40:41]"); a("v_pk_mul_f32 v[58:59], v[42:43], v[42:43]")
    for k in range(2, 8): a(f"v_pk_fma_f32 v[{56+2*(k&1)}:{57+2*(k&1)}], v[{40+2*k}:{41+2*k}], v[{40+2*k}:{41+2*k}], v[{56+2*(k&1)}:{57+2*(k&1)}]")
    a("v_pk_add_f32 v[56:57], v[56:57], v[58:59]"); a("v_add_f32 v56, v56, v57")
    a("v_cvt_pk_bf16_f32 v36, v36, v36"); a("v_lshlrev_b32 v36, 16, v36")
    allred16("v56", "v_add_f32"); swapred(["v56"], ["v57"], "v_add_f32", 16)
    div448("v56", "v58", "v59")
    a(f"""
    v_cvt_pk_bf16_f32 v56, v56, v56
    v_lshlrev_b32 v56, 16, v56
    v_add_f32 v56, {hx(C_EPS)}, v56
    v_cvt_pk_bf16_f32 v56, v56, v56
    v_lshlrev_b32 v56, 16, v56
    v_sqrt_f32 v56, v56
    v_cvt_pk_bf16_f32 v56, v56, v56
    v_lshlrev_b32 v56, 16, v56
    v_rcp_f32 v56, v56
    """)
    for k in range(8): a(f"v_pk_add_f32 v[{40+2*k}:{41+2*k}], v[{X+2*k}:{X+2*k+1}], v[36:37] op_sel_hi:[1,0] neg_lo:[0,1] neg_hi:[0,1]")
    for k in range(8): a(f"v_cvt_pk_bf16_f32 v{12+k}, v{40+2*k}, v{41+2*k}")
    for k in range(8):
        a(f"v_lshlrev_b32 v{40+2*k}, 16, v{12+k}"); a(f"v_and_b32 v{41+2*k}, 0xffff0000, v{12+k}")
    for k in range(8): a(f"v_pk_mul_f32 v[{40+2*k}:{41+2*k}], v[{40+2*k}:{41+2*k}], v[56:57] op_sel_hi:[1,0]")
    for k in range(8): a(f"v_cvt_pk_bf16_f32 v{12+k}, v{40+2*k}, v{41+2*k}")
    for k in range(8):
        a(f"v_lshlrev_b32 v{40+2*k}, 16, v{12+k}"); a(f"v_and_b32 v{41+2*k}, 0xffff0000, v{12+k}")
    a(f"""
    v_mul_u32_u24 v7, 1792, v6
    v_lshl_add_u32 v7, v5, 6, v7
    s_mul_i32 s72, s28, 448
    v_lshrrev_b32 v8, 2, v1
    v_lshl_add_u32 v8, v8, 2, s72
    s_mov_b64 exec, s[70:71]
    """)
    for k in range(4): a(f"ds_write_b128 v7, v[{40+4*k}:{43+4*k}] offset:{L_XN+16*k}")
    a("s_mov_b64 exec, -1")
    a("v_add_u32 v10, 1792, v8")
    a("s_waitcnt lgkmcnt(0)")
    tag()
    XV = 20
    for bb, ad in ((0, "v8"), (1, "v10")):
        for k in range(3): a(f"ds_read2_b32 v[{XV+8*bb+2*k}:{XV+8*bb+2*k+1}], {ad} offset0:{32*k} offset1:{32*k+16}")
        a(f"ds_read_b32 v{XV+8*bb+6}, {ad} offset:{6*64}")
    a("s_waitcnt lgkmcnt(0)")
    stamp(0, 2)
    ACC = 40
    for t in range(7):
        a(f"s_waitcnt vmcnt({6-t})")
        for k in range(4):
            a(f"v_lshlrev_b32 v{56+2*k}, 16, v{64+4*t+k}"); a(f"v_and_b32 v{57+2*k}, 0xffff0000, v{64+4*t+k}")
        for bb in range(2):
            xr = XV + 8*bb + (t & ~1)
            sel = "op_sel:[0,1{}] op_sel_hi:[1,1{}]" if (t & 1) else "op_sel:[0,0{}] op_sel_hi:[1,0{}]"
            for k in range(4):
                d = f"v[{ACC+8*bb+2*k}:{ACC+8*bb+2*k+1}]"
                if t == 0: a(f"v_pk_mul_f32 {d}, v[{56+2*k}:{57+2*k}], v[{xr}:{xr+1}] " + sel.format("", ""))
                else: a(f"v_pk_fma_f32 {d}, v[{56+2*k}:{57+2*k}], v[{xr}:{xr+1}], {d} " + sel.format(",0", ",1"))
    stamp(0, 3)
    for e in range(8): a(f"v_permlane32_swap_b32 v{ACC+e}, v{ACC+8+e}")
    for e in range(8): a(f"v_add_f32 v{ACC+e}, v{ACC+e}, v{ACC+8+e}")
    for e in range(4): a(f"v_permlane16_swap_b32 v{ACC+e}, v{ACC+4+e}")
    for e in range(4): a(f"v_add_f32 v{ACC+e}, v{ACC+e}, v{ACC+4+e}")
    a(f"""
    v_and_b32 v7, 3, v1
    v_lshlrev_b32 v7, 5, v7
    v_lshl_add_u32 v7, v6, 7, v7
    v_bfe_u32 v8, v1, 4, 1
    v_lshl_add_u32 v7, v8, 4, v7
    s_lshl_b32 s72, s28, 8
    v_add_u32 v7, s72, v7
    """)
    for m in ("row_ror:4", "row_ror:8"):
        for e in range(4): a(f"v_add_f32_dpp v{ACC+e}, v{ACC+e}, v{ACC+e} {m} row_mask:0xf bank_mask:0xf")
    a(f"""
    s_mov_b32 exec_lo, 0x000f000f
    s_mov_b32 exec_hi, 0x000f000f
    ds_write_b128 v7, v[{ACC}:{ACC+3}] offset:{L_RED}
    s_mov_b64 exec, 1
    v_mov_b32 v4, 1
    s_waitcnt lgkmcnt(0)
    ds_add_rtn_u32 v8, v3, v4
    s_lshl_b32 s72, s29, 12
    s_lshl_b32 s73, s32, 7
    s_add_u32 s72, s72, s73
    s_add_u32 s72, s72, {GQ}
    s_lshl_b32 s73, s34, 7
    s_add_u32 s73, s73, {GF}
    s_cmp_eq_u32 s31, 0
    s_cselect_b32 s72, s72, s73
    s_cselect_b32 s73, 11, 14
    s_add_u32 s74, s26, s72
    s_addc_u32 s75, s27, 0
    s_waitcnt lgkmcnt(0)
    v_readfirstlane_b32 s72, v8
    s_mov_b64 exec, 0xffff
    s_cmp_eq_u32 s72, 3
    s_cbranch_scc0 L_h_nopub
    v_lshlrev_b32 v7, 4, v1
    ds_read_b128 v[40:43], v7 offset:{L_RED}
    ds_read_b128 v[44:47], v7 offset:{L_RED+256}
    ds_read_b128 v[48:51], v7 offset:{L_RED+512}
    ds_read_b128 v[52:55], v7 offset:{L_RED+768}
    v_lshrrev_b32 v8, 3, v1
    v_lshlrev_b32 v8, s73, v8
    v_and_b32 v7, 7, v1
    v_lshl_add_u32 v8, v7, 4, v8
    v_mov_b32 v57, s33
    v_mov_b32 v59, s33
    s_waitcnt lgkmcnt(0)
    v_pk_add_f32 v[40:41], v[40:41], v[44:45]
    v_pk_add_f32 v[42:43], v[42:43], v[46:47]
    v_pk_add_f32 v[48:49], v[48:49], v[52:53]
    v_pk_add_f32 v[50:51], v[50:51], v[54:55]
    v_pk_add_f32 v[40:41], v[40:41], v[48:49]
    v_pk_add_f32 v[42:43], v[42:43], v[50:51]
    v_cvt_pk_bf16_f32 v56, v40, v41
    v_cvt_pk_bf16_f32 v58, v42, v43
    global_store_dwordx4 v8, v[56:59], s[74:75] sc1
    """)
    a.label("L_h_nopub")
    a("s_mov_b64 exec, -1")
    stamp(0, 4)
    a(f"""
    s_cmp_eq_u32 s28, 0
    s_cbranch_scc0 L_h_b1
    s_lshl_b32 s72, s29, 12
    s_lshl_b32 s73, s31, 11
    s_add_u32 s72, s72, s73
    s_add_u32 s72, s72, {GQ}
    s_add_u32 s74, s26, s72
    s_addc_u32 s75, s27, 0
    v_lshlrev_b32 v7, 4, v1
    """)
    poll("q", ["global_load_dwordx4 v[40:43], v7, s[74:75] sc1", "global_load_dwordx4 v[44:47], v7, s[74:75] offset:1024 sc1"], [40, 44])
    a(f"""
    v_mov_b32 v41, v42
    v_mov_b32 v45, v46
    v_lshlrev_b32 v7, 3, v1
    ds_write_b64 v7, v[40:41] offset:{L_Q}
    ds_write_b64 v7, v[44:45] offset:{L_Q+512}
    s_waitcnt lgkmcnt(0)
    """)
    a.label("L_h_b1")
    stamp(0, 5)
    a("s_barrier   ; B1")
    a("s_barrier   ; B2")
    a(f"""
    s_lshr_b32 s35, s28, 1
    s_lshl_b32 s72, s35, 5
    v_mov_b32 v7, s72
    ds_read_b128 v[40:43], v7 offset:{L_ML}
    ds_read_b128 v[44:47], v7 offset:{L_ML+16}
    s_mov_b32 s73, {hx(C_SC)}
    s_waitcnt lgkmcnt(0)
    v_max3_f32 v48, v40, v42, v44
    v_max_f32 v48, v48, v46
    v_sub_f32 v40, v40, v48
    v_sub_f32 v42, v42, v48
    v_sub_f32 v44, v44, v48
    v_sub_f32 v46, v46, v48
    v_mul_f32 v40, s73, v40
    v_mul_f32 v42, s73, v42
    v_mul_f32 v44, s73, v44
    v_mul_f32 v46, s73, v46
    v_exp_f32 v20, v40
    v_exp_f32 v22, v42
    v_exp_f32 v24, v44
    v_exp_f32 v26, v46
    v_mul_f32 v50, v20, v41
    v_fma_f32 v50, v22, v43, v50
    v_fma_f32 v50, v24, v45, v50
    v_fma_f32 v50, v26, v47, v50
    v_mov_b32 v49, s33
    v_mov_b32 v51, s33
    s_bitcmp1_b32 s28, 0
    s_cbranch_scc1 L_h_odd
    s_lshl_b32 s72, s29, 1
    s_add_u32 s72, s72, s35
    s_lshl_b32 s72, s72, 1
    s_add_u32 s72, s72, s31
    s_lshl_b32 s72, s72, 4
    s_add_u32 s72, s72, s32
    s_lshl_b32 s72, s72, 4
    s_add_u32 s72, s72, {GML}
    v_mov_b32 v7, s72
    s_mov_b64 exec, 1
    global_store_dwordx4 v7, v[48:51], s[26:27] sc1
    s_mov_b64 exec, -1
    s_cmp_eq_u32 s28, 0
    s_cbranch_scc0 L_h_b3
    s_lshl_b32 s72, s29, 1
    s_lshr_b32 s74, s30, 4
    s_add_u32 s72, s72, s74
    s_lshl_b32 s72, s72, 9
    s_add_u32 s72, s72, {GML}
    v_and_b32 v8, 31, v1
    v_lshl_add_u32 v7, v8, 4, s72
    """)
    poll("ml", ["global_load_dwordx4 v[40:43], v7, s[26:27] sc1"], [40])
    a("v_mov_b32 v44, v40")
    allred16("v44", "v_max_f32")
    a("v_sub_f32 v40, v40, v44"); a("v_mul_f32 v40, s73, v40"); a("v_exp_f32 v40, v40"); a("v_mul_f32 v42, v40, v42")
    allred16("v42", "v_add_f32")
    a(f"""
    v_rcp_f32 v43, v42
    v_lshlrev_b32 v8, 2, v8
    v_fma_f32 v44, -v42, v43, 1.0
    v_fma_f32 v43, v44, v43, v43
    v_mul_f32 v40, v40, v43
    ds_write_b32 v8, v40 offset:{L_WP}
    s_waitcnt lgkmcnt(0)
    s_branch L_h_b3
    """)
    a.label("L_h_odd")
    a(f"""
    s_cmp_eq_u32 s28, 1
    s_cbranch_scc0 L_h_3
    s_lshr_b32 s72, s30, 1
    s_lshl_b32 s72, s72, 3
    s_add_u32 s72, s72, s29
    v_and_b32 v8, 31, v1
    v_lshlrev_b32 v9, 2, v8
    v_mov_b32 v40, 0
    s_cmp_lt_u32 s72, 112
    s_cbranch_scc0 L_h_hzero
    s_lshl_b32 s72, s72, 6
    s_add_u32 s72, s72, {GF}
    v_bfe_u32 v7, v1, 4, 1
    v_lshl_add_u32 v7, v7, 14, s72
    v_bfe_u32 v10, v1, 2, 2
    v_lshl_add_u32 v7, v10, 4, v7
    v_add_u32 v10, {56*128}, v7
    """)
    poll("ffn", ["global_load_dwordx4 v[40:43], v7, s[26:27] sc1", "global_load_dwordx4 v[44:47], v10, s[26:27] sc1"], [40, 44])
    K0 = 0.7978845608028654
    a(f"""
    v_and_b32 v10, 2, v1
    v_cmp_eq_u32 vcc, 0, v10
    v_and_b32 v10, 1, v1
    v_lshlrev_b32 v10, 4, v10
    v_cndmask_b32 v40, v42, v40, vcc
    v_cndmask_b32 v44, v46, v44, vcc
    v_lshrrev_b32 v40, v10, v40
    v_lshrrev_b32 v44, v10, v44
    v_lshlrev_b32 v40, 16, v40         ; gate
    v_lshlrev_b32 v44, 16, v44         ; up
    v_mul_f32 v41, v40, v40
    v_mul_f32 v41, v41, v40
    v_mul_f32 v41, {hx(f2u(0.044715))}, v41
    v_add_f32 v41, v41, v40
    v_mul_f32 v41, {hx(f2u(-2.0*K0*LOG2E))}, v41
    v_exp_f32 v41, v41
    v_add_f32 v41, 1.0, v41
    v_rcp_f32 v41, v41
    v_mul_f32 v40, v40, v41
    v_cvt_pk_bf16_f32 v40, v40, v40
    v_lshlrev_b32 v40, 16, v40
    v_mul_f32 v40, v40, v44
    v_cvt_pk_bf16_f32 v40, v40, v40
    """)
    a.label("L_h_hzero")
    a(f"""
    ds_write_b32 v9, v40 offset:{L_HB}
    s_waitcnt lgkmcnt(0)
    s_branch L_h_b3
    """)
    a.label("L_h_3")
    a(f"""
    s_cmp_eq_u32 s2, 0
    s_cbranch_scc0 L_h_b3
    v_lshrrev_b32 v7, 4, v1
    v_lshlrev_b32 v7, 12, v7
    v_and_b32 v8, 15, v1
    v_lshl_add_u32 v7, v8, 7, v7
    v_add_u32 v7, {GQ}, v7
    v_add_u32 v8, 0x4000, v7
    v_lshlrev_b32 v9, 7, v1
    v_add_u32 v9, {GF}, v9
    v_add_u32 v10, 0x2000, v9
    """)
    poll("ep", ["global_load_dwordx4 v[40:43], v7, s[26:27] sc1", "global_load_dwordx4 v[44:47], v8, s[26:27] sc1",
                "global_load_dwordx4 v[48:51], v9, s[26:27] sc1", "global_load_dwordx4 v[52:55], v10, s[26:27] sc1"], [40, 44, 48, 52])
    a(f"""
    v_mov_b32 v7, {WS_EPOCH}
    v_mov_b32 v8, s33
    s_mov_b64 exec, 1
    global_store_dword v7, v8, s[26:27] sc1
    s_mov_b64 exec, -1
    """)
    a.label("L_h_b3")
    a(f"""
    s_lshl_b32 s72, s28, 9
    v_lshl_add_u32 v7, v1, 3, s72
    s_lshl_b32 s72, s29, 17
    s_lshl_b32 s73, s28, 15
    s_add_u32 s72, s72, s73
    s_lshl_b32 s73, s31, 12
    s_add_u32 s72, s72, s73
    s_lshl_b32 s73, s32, 8
    s_add_u32 s72, s72, s73
    s_add_u32 s72, s72, {GO}
    v_lshrrev_b32 v8, 4, v1
    v_lshl_add_u32 v8, v8, 13, s72
    v_and_b32 v9, 15, v1
    v_lshl_add_u32 v8, v9, 4, v8
    v_mov_b32 v41, s33
    v_mov_b32 v43, s33
    """)
    stamp(0, 6)
    a("s_barrier   ; B3")
    for s in range(4): a(f"ds_read_b64 v[{44+2*s}:{45+2*s}], v7 offset:{L_OP+2048*s}")
    a(f"""
    s_lshr_b32 s72, s28, 1
    s_lshl_b32 s73, s72, 10
    s_and_b32 s74, s28, 1
    s_mul_i32 s75, s74, 448
    s_add_u32 s73, s73, s75
    v_lshl_add_u32 v10, v1, 3, s73
    s_lshl_b32 s72, s72, 1
    s_and_b32 s73, s30, 1
    s_add_u32 s72, s72, s73
    s_lshl_b32 s72, s72, 7
    s_lshl_b32 s73, s29, 4
    s_add_u32 s72, s72, s73
    s_lshr_b32 s73, s30, 1
    s_add_u32 s72, s72, s73
    s_mul_i32 s72, s72, 1792
    s_mul_i32 s74, s74, 896
    s_add_u32 s72, s72, s74
    s_add_u32 s72, s72, {GA}
    v_lshl_add_u32 v11, v1, 4, s72
    {lg(3)}
    v_pk_mul_f32 v[52:53], v[44:45], v[20:21] op_sel_hi:[1,0]
    {lg(2)}
    v_pk_fma_f32 v[52:53], v[46:47], v[22:23], v[52:53] op_sel_hi:[1,0,1]
    {lg(1)}
    v_pk_fma_f32 v[52:53], v[48:49], v[24:25], v[52:53] op_sel_hi:[1,0,1]
    s_waitcnt lgkmcnt(0)
    v_pk_fma_f32 v[52:53], v[50:51], v[26:27], v[52:53] op_sel_hi:[1,0,1]
    v_mov_b32 v40, v52
    v_mov_b32 v42, v53
    global_store_dwordx4 v8, v[40:43], s[26:27] sc1
    v_mov_b32 v57, s33
    v_mov_b32 v59, s33
    s_mov_b32 exec_hi, 0x00ffffff
    s_barrier   ; B4
    """)
    for s in range(4): a(f"ds_read_b64 v[{44+2*s}:{45+2*s}], v10 offset:{L_AP+2048*s}")
    a(f"""
    {lg(2)}
    v_pk_add_f32 v[44:45], v[44:45], v[46:47]
    s_waitcnt lgkmcnt(0)
    v_pk_add_f32 v[48:49], v[48:49], v[50:51]
    v_add_f32 v56, v44, v48
    v_add_f32 v58, v45, v49
    global_store_dwordx4 v11, v[56:59], s[26:27] sc1
    """)
    stamp(0, 7)
    a("s_branch L_fin")

    a.label("L_streamer2")
    M = 8; S = 12; O = 20; D = 28; QB = 36; T = 52
    WO = 192; WD = 208; AC = 216
    a(f"""
    v_and_b32 v6, 15, v1
    v_lshlrev_b32 v3, 9, v4
    v_lshl_add_u32 v3, v6, 4, v3
    v_bfe_u32 v7, v1, 3, 1
    v_lshlrev_b32 v7, 9, v7
    v_lshl_add_u32 v7, v4, 6, v7
    v_lshl_add_u32 v7, v5, 4, v7
    ; masks M0..M3
    v_and_b32 v{T}, 1, v1
    v_lshlrev_b32 v{T}, 4, v{T}
    v_mov_b32 v{T+1}, 0xffff
    v_lshlrev_b32 v{T}, v{T}, v{T+1}
    v_bfe_u32 v{T+1}, v1, 1, 2
    """)
    for r in range(4):
        a(f"v_cmp_eq_u32 vcc, {r}, v{T+1}"); a(f"v_cndmask_b32 v{M+r}, 0, v{T}, vcc")
    a(f"""
    s_mov_b32 s70, 0xf0f0f0f0
    s_mov_b32 s71, 0xf0f0f0f0
    s_lshr_b32 s72, s30, 1             ; rb
    s_and_b32 s73, s30, 1              ; ch
    s_mul_i32 s73, s73, 448
    s_lshl_b32 s74, s29, 9
    s_lshl_b32 s75, s72, 5
    s_add_u32 s74, s74, s75
    s_lshl_b32 s75, s28, 3
    s_add_u32 s74, s74, s75
    s_mul_i32 s74, s74, 896
    s_add_u32 s74, s74, s73
    v_mul_u32_u24 v{T}, 1792, v4
    v_lshl_add_u32 v{T}, v6, 4, v{T}
    v_add_u32 v{T+10}, s74, v{T}
    s_lshl_b32 s74, s72, 3
    s_add_u32 s74, s74, s29
    s_lshl_b32 s74, s74, 4
    s_lshl_b32 s75, s28, 2
    s_add_u32 s74, s74, s75
    s_mul_i32 s74, s74, 896
    s_add_u32 s74, s74, s73
    v_mul_u32_u24 v{T}, 896, v4
    v_lshl_add_u32 v{T}, v6, 4, v{T}
    v_add_u32 v{T+11}, s74, v{T}
    s_mov_b32 s44, s12
    s_mov_b32 s45, s13
    s_mov_b32 s46, {4096*896}
    s_mov_b32 s47, 0x20000
    s_mov_b32 s48, s20
    s_mov_b32 s49, s21
    s_mov_b32 s50, {1792*896}
    s_mov_b32 s51, 0x20000
    s_waitcnt lgkmcnt(0)
    """)
    tag()
    a("s_barrier   ; B1")
    stamp(1, 2)
    a(f"ds_read_b128 v[{T}:{T+3}], v7 offset:{L_Q}")
    a(f"ds_read_b128 v[{T+4}:{T+7}], v7 offset:{L_Q+256}")
    a(lg(1))
    for k in range(4): a(f"v_cndmask_b32 v{QB+k}, v{T+k}, 0, s[70:71]"); a(f"v_cndmask_b32 v{QB+8+k}, 0, v{T+k}, s[70:71]")
    a("s_waitcnt lgkmcnt(0)")
    for k in range(4): a(f"v_cndmask_b32 v{QB+4+k}, v{T+4+k}, 0, s[70:71]"); a(f"v_cndmask_b32 v{QB+12+k}, 0, v{T+4+k}, s[70:71]")
    def qk(t):
        d = D + 4*(t & 1)
        for j in range(4):
            r = KV + (t*4 + j)*4
            c = "0" if j == 0 else f"v[{d}:{d+3}]"
            a(f"v_mfma_f32_16x16x32_bf16 v[{d}:{d+3}], v[{r}:{r+3}], v[{QB+4*j}:{QB+4*j+3}], {c}")
    def red(t):
        d = D + 4*(t & 1)
        a(f"v_mov_b32_dpp v{T}, v{d} quad_perm:[0,0,0,0] row_mask:0xf bank_mask:0xf")
        a(f"v_mov_b32_dpp v{T+1}, v{d+2} quad_perm:[2,2,2,2] row_mask:0xf bank_mask:0xf")
        a(f"v_add_f32_dpp v{T}, v{d+1}, v{T} quad_perm:[1,1,1,1] row_mask:0xf bank_mask:0xf")
        a(f"v_add_f32_dpp v{T+1}, v{d+3}, v{T+1} quad_perm:[3,3,3,3] row_mask:0xf bank_mask:0xf")
        a(f"v_add_f32 v{S+t}, v{T}, v{T+1}")
    vq = 0
    def vgroup():
        nonlocal vq
        for j in range(4): vload(vq*2 + (j >> 1), j & 1)
        vq += 1
    for t in range(8):
        a(f"s_waitcnt vmcnt({4*(7-t) + 4*vq})")
        qk(t)
        if t > 0: red(t-1)
        if t >= lag - 1 and t < 7: vgroup()
    red(7)
    stamp(1, 3)
    for k in range(4): a(f"v_cvt_pk_bf16_f32 v{T+k}, v{S+2*k}, v{S+2*k+1}")
    for k in range(4): a(f"v_lshlrev_b32 v{S+2*k}, 16, v{T+k}"); a(f"v_and_b32 v{S+2*k+1}, 0xffff0000, v{T+k}")
    a(f"""
    v_max3_f32 v{T}, v{S}, v{S+1}, v{S+2}
    v_max3_f32 v{T+2}, v{S+3}, v{S+4}, v{S+5}
    v_max3_f32 v{T}, v{T}, v{S+6}, v{S+7}
    v_max_f32 v{T}, v{T}, v{T+2}
    v_max_f32_dpp v{T}, v{T}, v{T} row_half_mirror row_mask:0xf bank_mask:0xf
    s_mov_b32 s72, {hx(C_SC)}
    """)
    swapred([f"v{T}"], [f"v{T+2}"], "v_max_f32", 16); swapred([f"v{T}"], [f"v{T+2}"], "v_max_f32", 32)
    for t in range(8): a(f"v_sub_f32 v{S+t}, v{S+t}, v{T}")
    for t in range(8): a(f"v_mul_f32 v{S+t}, s72, v{S+t}")
    for t in range(8): a(f"v_exp_f32 v{S+t}, v{S+t}")
    a(f"""
    v_add_f32 v{T+1}, v{S}, v{S+1}
    v_add_f32 v{T+2}, v{S+2}, v{S+3}
    v_add_f32 v{T+3}, v{S+4}, v{S+5}
    v_add_f32 v{T+4}, v{S+6}, v{S+7}
    v_add_f32 v{T+1}, v{T+1}, v{T+2}
    v_add_f32 v{T+3}, v{T+3}, v{T+4}
    v_add_f32 v{T+1}, v{T+1}, v{T+3}
    v_add_f32_dpp v{T+1}, v{T+1}, v{T+1} row_half_mirror row_mask:0xf bank_mask:0xf
    """)
    swapred([f"v{T+1}"], [f"v{T+2}"], "v_add_f32", 16); swapred([f"v{T+1}"], [f"v{T+2}"], "v_add_f32", 32)
    a(f"""
    v_bfe_u32 v7, v1, 3, 1
    v_lshlrev_b32 v7, 5, v7
    s_lshl_b32 s72, s28, 3
    v_add_u32 v7, s72, v7
    s_mov_b64 exec, 0x101
    ds_write_b64 v7, v[{T}:{T+1}] offset:{L_ML}
    s_mov_b64 exec, -1
    s_waitcnt lgkmcnt(0)
    s_barrier   ; B2
    """)
    while vq < 8: vgroup()
    a(f"buffer_load_dwordx4 v[{WD}:{WD+3}], v{T+11}, s[48:51], 0 offen {oflags}")
    for m in range(2): a(f"buffer_load_dwordx4 v[{WO+8*m}:{WO+8*m+3}], v{T+10}, s[44:47], 0 offen offset:{896*m} {oflags}")
    a("s_mov_b32 exec_lo, 0x0fff0fff"); a("s_mov_b32 exec_hi, 0x0fff0fff")
    a(f"buffer_load_dwordx4 v[{WD+4}:{WD+7}], v{T+11}, s[48:51], 0 offen offset:256 {oflags}")
    for m in range(2): a(f"buffer_load_dwordx4 v[{WO+8*m+4}:{WO+8*m+7}], v{T+10}, s[44:47], 0 offen offset:{896*m+256} {oflags}")
    a("s_mov_b64 exec, -1")
    stamp(1, 4)
    for t in range(8): a(f"v_cvt_pk_bf16_f32 v{S+t}, v{S+t}, v{S+t}")
    a(f"""
    v_lshrrev_b32 v7, 1, v4
    v_lshlrev_b32 v7, 10, v7
    v_lshl_add_u32 v7, v6, 5, v7
    v_and_b32 v{T}, 1, v4
    v_lshl_add_u32 v7, v{T}, 4, v7         ; (G>>1)*1024 + j*32 + (G&1)*16
    s_lshl_b32 s72, s28, 11
    v_add_u32 v7, s72, v7
    s_lshl_b32 s72, s29, 17
    s_lshr_b32 s73, s30, 1
    s_lshl_b32 s73, s73, 13
    s_add_u32 s72, s72, s73
    s_lshl_b32 s73, s28, 6
    s_add_u32 s72, s72, s73
    s_add_u32 s72, s72, {GO}
    v_lshrrev_b32 v{T+8}, 2, v1
    v_lshlrev_b32 v{T+9}, 2, v{T+8}
    v_lshl_add_u32 v{T+8}, v{T+8}, 8, s72
    v_lshl_add_u32 v{T+8}, v5, 4, v{T+8}
    v_add_u32 v2, 0x1000, v{T+8}
    v_bfe_u32 v3, v1, 3, 1
    v_lshl_add_u32 v3, v3, 4, v4
    s_lshl_b32 s72, s28, 4
    v_lshl_add_u32 v3, v3, 2, s72
    """)
    def pv_prep(t):
        A = QB + 8*(t & 1)
        a(f"v_mov_b32_dpp v{T}, v{S+t} row_half_mirror row_mask:0xf bank_mask:0xf")
        for r in range(2): a(f"v_and_b32 v{A+r}, v{S+t}, v{M+r}")
        for r in range(2, 4): a(f"v_and_b32 v{A+4+r}, v{S+t}, v{M+r}")
        for r in range(2, 4): a(f"v_and_b32 v{A+r}, v{T}, v{M+r}")
        for r in range(2): a(f"v_and_b32 v{A+4+r}, v{T}, v{M+r}")
    pv_prep(0)
    for t in range(8):
        if t < 7: pv_prep(t+1)
        A = QB + 8*(t & 1)
        a(f"s_waitcnt vmcnt({6 + 4*(7-t)})")
        for j in range(4):
            r = KV + (t*4 + j)*4; hf = j & 1; sg = j >> 1
            c = "0" if (t == 0 and sg == 0) else f"v[{O+4*hf}:{O+4*hf+3}]"
            a(f"v_mfma_f32_16x16x32_bf16 v[{O+4*hf}:{O+4*hf+3}], v[{A+4*sg}:{A+4*sg+3}], v[{r}:{r+3}], {c}")
    stamp(1, 5)
    a(f"""
    ds_write_b128 v7, v[{O}:{O+3}] offset:{L_OP}
    ds_write_b128 v7, v[{O+4}:{O+7}] offset:{L_OP+512}
    s_waitcnt lgkmcnt(0)
    s_barrier   ; B3
    ds_read_b32 v{T}, v3 offset:{L_HB}
    ds_read_b32 v{T+1}, v{T+9} offset:{L_WP}
    ds_read_b32 v{T+2}, v{T+9} offset:{L_WP+64}
    s_mov_b32 s72, 0x01000100
    s_mov_b32 s73, 0x03020302
    s_mov_b32 s70, 0xff00ff00
    s_mov_b32 s71, 0xff00ff00
    {lg(2)}
    v_perm_b32 v{T}, v{T}, v{T}, s72
    """)
    for r in range(4): a(f"v_and_b32 v{QB+r}, v{T}, v{M+r}")
    a("s_waitcnt vmcnt(2)")
    a(f"v_mfma_f32_16x16x32_bf16 v[{AC}:{AC+3}], v[{QB}:{QB+3}], v[{WD}:{WD+3}], 0")
    a(f"v_mfma_f32_16x16x32_bf16 v[{AC+4}:{AC+7}], v[{QB}:{QB+3}], v[{WD+4}:{WD+7}], 0")
    poll("o", [f"global_load_dwordx4 v[64:67], v{T+8}, s[26:27] sc1", "global_load_dwordx4 v[68:71], v2, s[26:27] sc1"], [64, 68])
    stamp(1, 6)
    a(f"""
    s_waitcnt lgkmcnt(0)
    v_mul_f32 v64, v64, v{T+1}
    v_mul_f32 v66, v66, v{T+1}
    v_mul_f32 v68, v68, v{T+2}
    v_mul_f32 v70, v70, v{T+2}
    """)
    vs = ["v64", "v66", "v68", "v70"]
    a("v_permlane32_swap_b32 v64, v68"); a("v_permlane32_swap_b32 v66, v70")
    a("v_add_f32 v64, v64, v68"); a("v_add_f32 v66, v66, v70")
    swapred(["v64", "v66"], ["v65", "v67"], "v_add_f32", 16)
    for m in ("row_ror:4", "row_ror:8"):
        for v in ("v64", "v66"): a(f"v_add_f32_dpp {v}, {v}, {v} {m} row_mask:0xf bank_mask:0xf")
    a("v_cvt_pk_bf16_f32 v64, v64, v66")
    a("v_mov_b32 v65, v64")
    a("v_permlane32_swap_b32 v64, v65")
    a("v_cndmask_b32 v64, v64, v65, s[70:71]")
    for g in range(4): a(f"v_mov_b32_dpp v66, v64 quad_perm:[{g},{g},{g},{g}] row_mask:{hex(1 << g)} bank_mask:0xf")
    a("v_perm_b32 v67, v66, v66, s72"); a("v_perm_b32 v68, v66, v66, s73")
    for r in range(4): a(f"v_and_b32 v{QB+r}, v67, v{M+r}")
    for r in range(4): a(f"v_and_b32 v{QB+4+r}, v68, v{M+r}")
    for m in range(2):
        for cb in range(2):
            a(f"v_mfma_f32_16x16x32_bf16 v[{AC+4*cb}:{AC+4*cb+3}], v[{QB+4*m}:{QB+4*m+3}], v[{WO+8*m+4*cb}:{WO+8*m+4*cb+3}], v[{AC+4*cb}:{AC+4*cb+3}]")
    a(f"""
    ds_write_b128 v7, v[{AC}:{AC+3}] offset:{L_AP}
    ds_write_b128 v7, v[{AC+4}:{AC+7}] offset:{L_AP+512}
    s_waitcnt lgkmcnt(0)
    s_barrier   ; B4
    s_cmp_eq_u32 s28, 0
    s_cbranch_scc0 L_s_fin
    s_cmp_lt_u32 s32, 7
    s_cbranch_scc0 L_s_fin
    s_lshl_b32 s72, s32, 3
    s_add_u32 s72, s72, s29            ; cc
    s_cmp_ge_u32 s72, 28
    s_cselect_b32 s73, 1, 0
    s_mul_i32 s74, s73, 28
    s_sub_u32 s74, s72, s74
    s_lshl_b32 s74, s74, 6
    s_lshl_b32 s75, s31, 1
    s_add_u32 s75, s75, s73
    s_mul_i32 s75, s75, {128*1792}
    s_add_u32 s74, s74, s75
    s_add_u32 s74, s74, {GA}
    s_add_u32 s36, s26, s74
    s_addc_u32 s37, s27, 0
    s_mov_b32 s38, {128*1792}
    v_lshrrev_b32 v2, 2, v1
    v_mul_u32_u24 v2, 1792, v2
    v_lshl_add_u32 v2, v5, 4, v2
    s_mul_i32 s74, s31, 896
    s_lshl_b32 s72, s72, 4
    s_add_u32 s72, s72, s74
    v_lshl_add_u32 v3, v5, 2, s72
    global_load_dword v6, v3, s[4:5]
    """)
    for k in range(1, 8): a(f"s_mov_b32 s{52+k}, {k*16*1792}")
    poll("a", [f"buffer_load_dwordx4 v[{64+4*k}:{67+4*k}], v2, s[36:39], {'0' if k == 0 else 's%d' % (52+k)} offen sc1" for k in range(8)], [64+4*k for k in range(8)])
    for k in range(0, 8, 2): a(f"v_add_f32 v{64+4*k}, v{64+4*k}, v{68+4*k}"); a(f"v_add_f32 v{66+4*k}, v{66+4*k}, v{70+4*k}")
    for k in range(0, 8, 4): a(f"v_add_f32 v{64+4*k}, v{64+4*k}, v{72+4*k}"); a(f"v_add_f32 v{66+4*k}, v{66+4*k}, v{74+4*k}")
    a("v_add_f32 v64, v64, v80"); a("v_add_f32 v66, v66, v82")
    swapred(["v64", "v66"], ["v65", "v67"], "v_add_f32", 32)
    swapred(["v64", "v66"], ["v65", "v67"], "v_add_f32", 16)
    a("v_lshlrev_b32 v68, 16, v6"); a("v_and_b32 v69, 0xffff0000, v6")
    for m in ("row_ror:4", "row_ror:8"):
        for v in ("v64", "v66"): a(f"v_add_f32_dpp {v}, {v}, {v} {m} row_mask:0xf bank_mask:0xf")
    a("""
    v_add_f32 v64, v64, v68
    v_add_f32 v66, v66, v69
    v_cvt_pk_bf16_f32 v64, v64, v66
    s_mov_b64 exec, 15
    global_store_dword v3, v64, s[22:23]
    """)
    a.label("L_s_fin")
    stamp(1, 7)
    a("s_add_u32 s28, s28, 4")
    a.label("L_fin")
    if stamps:
        a(f"""
        s_lshl_b32 s72, s2, 3
        s_add_u32 s72, s72, s28
        s_lshl_b32 s72, s72, 6
        s_add_u32 s72, s72, {TS}
        s_add_u32 s26, s26, s72
        s_addc_u32 s27, s27, 0
        s_waitcnt lgkmcnt(0)
        s_mov_b64 exec, 1
        """)
        for j in range(16): a(f"v_mov_b32 v{8+j}, s{80+j}")
        a("v_mov_b32 v2, 0")
        for j in range(4): a(f"global_store_dwordx4 v2, v[{8+4*j}:{11+4*j}], s[26:27] offset:{16*j}")
    a.label("L_end")
    a("s_endpgm")
    hdr = ["parallel_sum(sliding-window cached attention, GeGLU FFN) decode step, one persistent launch.",
           "256 workgroups (one per CU) x 8 waves: waves 0-3 helpers, waves 4-7 K/V streamers.",
           "Generated by the author's own generator script."]
    return header(hdr, 256, 512, LDS_SIZE) + a.text() + footer(256, 102, 256)

if __name__ == "__main__":
    open("k1.s", "w").write(gen())
    open("k1_ts.s", "w").write(gen(stamps=True))
```

```python
import sys, struct
from asmlib import *

def f2u(x): return struct.unpack("<I", struct.pack("<f", x))[0]
def hx(x): return f"0x{x & 0xffffffff:08x}"

WS_EPOCH = 0
GQ  = 0x10000
GF  = 0x18000
GML = 0x20000
GO  = 0x100000
GA  = 0x200000
TS  = 64 << 20
L_XN = 0
L_RED = 4096
L_CNT = 5120
L_Q = 5376
L_ML = 6400
L_WP = 6528
L_HB = 6656
L_OP = 8192
L_AP = 16384
LDS_SIZE = 24576

LOG2E = 1.4426950408889634
C_SC = f2u(LOG2E / 16.0)
C_I448 = f2u(1.0 / 448.0)
C_EPS = f2u(1e-5)

def gen(stamps=False, kflags="nt", wflags="nt", oflags="nt", hashmul=0x9E3779B1, pre_k=0, lag=4, warm=True, prio=True, spin=1 << 17, diag=0):
    a = Asm()
    nst = [0, 0]
    def stamp(role, i):
        if stamps: a(f"s_memrealtime s[{80+2*i}:{81+2*i}]")
    def lg(n): return f"s_waitcnt lgkmcnt({0 if stamps else n})"
    def poll(name, loads, regs, cnt="s96"):
        a(f"s_mov_b32 {cnt}, 0")
        a("s_mov_b64 s[78:79], exec")
        a.label(f"L_poll_{name}")
        for l in loads: a(l)
        a("s_waitcnt vmcnt(0)")
        first = True
        for r in regs:
            for k in (1, 3):
                if first: a(f"v_cmp_ne_u32 vcc, s33, v{r+k}"); first = False
                else:
                    a(f"v_cmp_ne_u32 s[76:77], s33, v{r+k}")
                    a("s_or_b64 vcc, vcc, s[76:77]")
        a(f"s_cbranch_scc0 L_got_{name}")
        a("s_mov_b64 exec, vcc")
        a(f"s_add_u32 {cnt}, {cnt}, 1")
        a(f"s_cmp_lt_u32 {cnt}, {spin}")
        a(f"s_cbranch_scc1 L_poll_{name}")
        a("s_endpgm")
        a.label(f"L_got_{name}")
        a("s_mov_b64 exec, s[78:79]")
    def allred16(v, op, tmp=None):
        for m in ("quad_perm:[1,0,3,2]", "quad_perm:[2,3,0,1]", "row_half_mirror", "row_mirror"):
            a(f"{op}_dpp {v}, {v}, {v} {m} row_mask:0xf bank_mask:0xf")
    def swapred(vs, tmps, op, which):
        for v, t in zip(vs, tmps): a(f"v_mov_b32 {t}, {v}")
        for v, t in zip(vs, tmps): a(f"v_permlane{which}_swap_b32 {t}, {v}")
        for v, t in zip(vs, tmps): a(f"{op} {v}, {v}, {t}")
    def tag():
        a("s_mul_i32 s33, s33, 0x41C64E6D"); a("s_add_u32 s33, s33, 0x3C6EF35F")

    stamp(0, 0)
    if diag: a("s_memrealtime s[98:99]")
    a("""
    s_cmp_ge_u32 s2, 256
    s_cbranch_scc1 L_end
    s_load_dwordx16 s[4:19], s[0:1], 0
    s_load_dwordx8 s[20:27], s[0:1], 64
    v_lshrrev_b32 v2, 6, v0
    v_and_b32 v1, 63, v0
    s_and_b32 s29, s2, 7
    v_readfirstlane_b32 s28, v2
    s_lshr_b32 s30, s2, 3
    s_lshr_b32 s31, s30, 4
    s_and_b32 s32, s30, 15
    s_cmp_ge_u32 s28, 4
    s_cbranch_scc1 L_streamer
    """)
    if prio: a("s_setprio 2")
    a(f"""
    v_mov_b32 v3, {L_CNT}
    v_mov_b32 v4, 0
    ds_write_b32 v3, v4
    v_and_b32 v5, 31, v1
    v_lshrrev_b32 v6, 5, v1
    v_mul_u32_u24 v7, 896, v6
    v_lshl_add_u32 v7, v5, 5, v7
    v_cmp_gt_u32 s[70:71], 28, v5
    v_mov_b32 v8, 0x10000
    s_lshl_b32 s34, s32, 3
    s_add_u32 s34, s34, s29
    s_cmp_ge_u32 s34, 56
    s_cselect_b32 s35, 56, 0
    s_sub_u32 s35, s34, s35            ; tile
    s_lshl_b32 s35, s35, 6
    s_lshl_b32 s72, s29, 10
    s_lshl_b32 s73, s32, 6
    s_add_u32 s72, s72, s73
    v_cndmask_b32 v7, v8, v7, s[70:71]
    s_cmp_eq_u32 s31, 0
    s_cselect_b32 s35, s72, s35
    s_mov_b32 s72, 3584
    s_cselect_b32 s72, 8192, s72
    s_mul_i32 s73, s28, 112
    v_lshrrev_b32 v9, 2, v1
    v_add_u32 v9, s73, v9              ; row
    v_and_b32 v10, 3, v1
    v_lshlrev_b32 v10, 4, v10
    v_mad_u32_u24 v9, v9, s72, v10
    v_add_u32 v9, s35, v9
    s_lshl_b32 s73, s72, 4             ; 16 rows
    s_mov_b32 s52, 0
    """)
    for t in range(1, 7): a(f"s_mul_i32 s{52+t}, s73, {t}")
    a(f"""
    s_cmp_lt_u32 s34, 112
    s_cselect_b32 s74, {448*3584}, 0
    s_cmp_eq_u32 s31, 0
    s_cselect_b32 s42, {448*8192}, s74
    s_mov_b32 s43, 0x20000
    s_mov_b32 s38, 1792
    s_mov_b32 s39, 0x20000
    s_getpc_b64 s[74:75]
L_pc:
    s_sub_u32 s74, s74, L_pc-{NAME}_kernel
    s_subb_u32 s75, s75, 0
    v_lshl_add_u32 v11, s30, 3, v1
    v_lshlrev_b32 v11, 6, v11
    v_min_u32 v11, L_end-{NAME}_kernel, v11
    s_waitcnt lgkmcnt(0)
    s_mov_b32 s36, s4
    s_mov_b32 s37, s5
    buffer_load_dwordx4 v[12:15], v7, s[36:39], 0 offen
    buffer_load_dwordx4 v[16:19], v7, s[36:39], 0 offen offset:16
    s_load_dword s33, s[26:27], {WS_EPOCH}
    s_cmp_ge_u32 s34, 56
    s_cselect_b32 s40, s18, s16
    s_cselect_b32 s41, s19, s17
    s_cmp_eq_u32 s31, 0
    s_cselect_b32 s40, s10, s40
    s_cselect_b32 s41, s11, s41
    """)
    nwarm = 0
    if warm:
        a("s_mov_b64 exec, 0xff")
        a("global_load_dword v100, v11, s[74:75]")
        a("s_mov_b64 exec, -1")
        nwarm = 1
    for t in range(7): a(f"buffer_load_dwordx4 v[{64+4*t}:{67+4*t}], v9, s[40:43], s{52+t} offen {wflags}")
    a("s_barrier   ; B0")
    a("s_branch L_helper2")

    a.label("L_streamer")
    a(f"""
    s_mul_i32 s34, s2, {hx(hashmul)}
    s_lshr_b32 s34, s34, 26            ; h (6 bit)
    s_sub_u32 s28, s28, 4
    s_lshr_b32 s35, s34, 4
    s_xor_b32 s35, s35, s28
    s_lshl_b32 s35, s35, 15
    s_and_b32 s34, s34, 15
    s_lshl_b32 s34, s34, 11
    s_lshl_b32 s72, s31, 3
    s_add_u32 s72, s72, s29
    s_lshl_b32 s72, s72, 24
    s_lshl_b32 s73, s32, 17
    s_add_u32 s72, s72, s73
    s_add_u32 s72, s72, s35
    s_add_u32 s72, s72, {(32768-4096)*512}
    v_bfe_u32 v2, v1, 2, 2
    v_lshlrev_b32 v2, 9, v2
    v_lshrrev_b32 v4, 4, v1            ; g
    v_lshl_add_u32 v2, v4, 6, v2
    v_and_b32 v5, 3, v1
    v_lshl_add_u32 v2, v5, 4, v2
    s_mov_b32 s38, 0x8000
    s_mov_b32 s39, 0x20000
    s_mov_b32 s42, 0x8000
    s_mov_b32 s43, 0x20000
    """)
    for u in range(16): a(f"s_xor_b32 s{52+u}, s34, {u << 11}")
    a(f"""
    s_waitcnt lgkmcnt(0)
    s_add_u32 s36, s6, s72
    s_addc_u32 s37, s7, 0
    s_add_u32 s40, s8, s72
    s_addc_u32 s41, s9, 0
    """)
    KV = 64
    def kload(u, hf): a(f"buffer_load_dwordx4 v[{KV+(u*2+hf)*4}:{KV+(u*2+hf)*4+3}], v2, s[36:39], s{52+u} offen offset:{hf*256} {kflags}")
    def vload(u, hf): a(f"buffer_load_dwordx4 v[{KV+(u*2+hf)*4}:{KV+(u*2+hf)*4+3}], v3, s[40:43], s{52+u} offen offset:{hf*256} {kflags}")
    seq = [(u, hf) for u in range(16) for hf in range(2)]
    for (u, hf) in seq[:pre_k]: kload(u, hf)
    a("s_barrier   ; B0")
    for (u, hf) in seq[pre_k:]: kload(u, hf)
    stamp(1, 1)
    a(f"s_load_dword s33, s[26:27], {WS_EPOCH}")
    a("s_branch L_streamer2")

    a.label("L_helper2")
    X = 20
    a(f"s_waitcnt vmcnt({7+nwarm})")
    stamp(0, 1)
    for k in range(8):
        a(f"v_lshlrev_b32 v{X+2*k}, 16, v{12+k}")
        a(f"v_and_b32 v{X+2*k+1}, 0xffff0000, v{12+k}")
    a(f"v_pk_add_f32 v[36:37], v[{X}:{X+1}], v[{X+2}:{X+3}]")
    a(f"v_pk_add_f32 v[38:39], v[{X+4}:{X+5}], v[{X+6}:{X+7}]")
    a(f"v_pk_add_f32 v[40:41], v[{X+8}:{X+9}], v[{X+10}:{X+11}]")
    a(f"v_pk_add_f32 v[42:43], v[{X+12}:{X+13}], v[{X+14}:{X+15}]")
    a("v_pk_add_f32 v[36:37], v[36:37], v[38:39]")
    a("v_pk_add_f32 v[40:41], v[40:41], v[42:43]")
    a("v_pk_add_f32 v[36:37], v[36:37], v[40:41]")
    a("v_add_f32 v36, v36, v37")
    a(f"s_mov_b32 s72, {hx(C_I448)}"); a(f"s_mov_b32 s73, {hx(f2u(448.0))}")
    allred16("v36", "v_add_f32"); swapred(["v36"], ["v37"], "v_add_f32", 16)
    def div448(v, t1, t2):
        a(f"v_mul_f32 {t1}, s72, {v}"); a(f"v_fma_f32 {t2}, -{t1}, s73, {v}"); a(f"v_fma_f32 {v}, {t2}, s72, {t1}")
    div448("v36", "v38", "v39")
    a("v_cndmask_b32 v38, 0, v36, s[70:71]")
    for k in range(8): a(f"v_pk_add_f32 v[{40+2*k}:{41+2*k}], v[{X+2*k}:{X+2*k+1}], v[38:39] op_sel_hi:[1,0] neg_lo:[0,1] neg_hi:[0,1]")
    a("v_pk_mul_f32 v[56:57], v[40:41], v[40:41]"); a("v_pk_mul_f32 v[58:59], v[42:43], v[42:43]")
    for k in range(2, 8): a(f"v_pk_fma_f32 v[{56+2*(k&1)}:{57+2*(k&1)}], v[{40+2*k}:{41+2*k}], v[{40+2*k}:{41+2*k}], v[{56+2*(k&1)}:{57+2*(k&1)}]")
    a("v_pk_add_f32 v[56:57], v[56:57], v[58:59]"); a("v_add_f32 v56, v56, v57")
    a("v_cvt_pk_bf16_f32 v36, v36, v36"); a("v_lshlrev_b32 v36, 16, v36")
    allred16("v56", "v_add_f32"); swapred(["v56"], ["v57"], "v_add_f32", 16)
    div448("v56", "v58", "v59")
    a(f"""
    v_cvt_pk_bf16_f32 v56, v56, v56
    v_lshlrev_b32 v56, 16, v56
    v_add_f32 v56, {hx(C_EPS)}, v56
    v_cvt_pk_bf16_f32 v56, v56, v56
    v_lshlrev_b32 v56, 16, v56
    v_sqrt_f32 v56, v56
    v_cvt_pk_bf16_f32 v56, v56, v56
    v_lshlrev_b32 v56, 16, v56
    v_rcp_f32 v56, v56
    """)
    for k in range(8): a(f"v_pk_add_f32 v[{40+2*k}:{41+2*k}], v[{X+2*k}:{X+2*k+1}], v[36:37] op_sel_hi:[1,0] neg_lo:[0,1] neg_hi:[0,1]")
    for k in range(8): a(f"v_cvt_pk_bf16_f32 v{12+k}, v{40+2*k}, v{41+2*k}")
    for k in range(8):
        a(f"v_lshlrev_b32 v{40+2*k}, 16, v{12+k}"); a(f"v_and_b32 v{41+2*k}, 0xffff0000, v{12+k}")
    for k in range(8): a(f"v_pk_mul_f32 v[{40+2*k}:{41+2*k}], v[{40+2*k}:{41+2*k}], v[56:57] op_sel_hi:[1,0]")
    for k in range(8): a(f"v_cvt_pk_bf16_f32 v{12+k}, v{40+2*k}, v{41+2*k}")
    for k in range(8):
        a(f"v_lshlrev_b32 v{40+2*k}, 16, v{12+k}"); a(f"v_and_b32 v{41+2*k}, 0xffff0000, v{12+k}")
    a(f"""
    v_mul_u32_u24 v7, 1792, v6
    v_lshl_add_u32 v7, v5, 6, v7
    s_mul_i32 s72, s28, 448
    v_lshrrev_b32 v8, 2, v1
    v_lshl_add_u32 v8, v8, 2, s72
    s_mov_b64 exec, s[70:71]
    """)
    for k in range(4): a(f"ds_write_b128 v7, v[{40+4*k}:{43+4*k}] offset:{L_XN+16*k}")
    a("s_mov_b64 exec, -1")
    a("v_add_u32 v10, 1792, v8")
    a("s_waitcnt lgkmcnt(0)")
    tag()
    XV = 20
    for bb, ad in ((0, "v8"), (1, "v10")):
        for k in range(3): a(f"ds_read2_b32 v[{XV+8*bb+2*k}:{XV+8*bb+2*k+1}], {ad} offset0:{32*k} offset1:{32*k+16}")
        a(f"ds_read_b32 v{XV+8*bb+6}, {ad} offset:{6*64}")
    a("s_waitcnt lgkmcnt(0)")
    stamp(0, 2)
    ACC = 40
    for t in range(7):
        a(f"s_waitcnt vmcnt({6-t})")
        for k in range(4):
            a(f"v_lshlrev_b32 v{56+2*k}, 16, v{64+4*t+k}"); a(f"v_and_b32 v{57+2*k}, 0xffff0000, v{64+4*t+k}")
        for bb in range(2):
            xr = XV + 8*bb + (t & ~1)
            sel = "op_sel:[0,1{}] op_sel_hi:[1,1{}]" if (t & 1) else "op_sel:[0,0{}] op_sel_hi:[1,0{}]"
            for k in range(4):
                d = f"v[{ACC+8*bb+2*k}:{ACC+8*bb+2*k+1}]"
                if t == 0: a(f"v_pk_mul_f32 {d}, v[{56+2*k}:{57+2*k}], v[{xr}:{xr+1}] " + sel.format("", ""))
                else: a(f"v_pk_fma_f32 {d}, v[{56+2*k}:{57+2*k}], v[{xr}:{xr+1}], {d} " + sel.format(",0", ",1"))
    stamp(0, 3)
    for e in range(8): a(f"v_permlane32_swap_b32 v{ACC+e}, v{ACC+8+e}")
    for e in range(8): a(f"v_add_f32 v{ACC+e}, v{ACC+e}, v{ACC+8+e}")
    for e in range(4): a(f"v_permlane16_swap_b32 v{ACC+e}, v{ACC+4+e}")
    for e in range(4): a(f"v_add_f32 v{ACC+e}, v{ACC+e}, v{ACC+4+e}")
    a(f"""
    v_and_b32 v7, 3, v1
    v_lshlrev_b32 v7, 5, v7
    v_lshl_add_u32 v7, v6, 7, v7
    v_bfe_u32 v8, v1, 4, 1
    v_lshl_add_u32 v7, v8, 4, v7
    s_lshl_b32 s72, s28, 8
    v_add_u32 v7, s72, v7
    """)
    for m in ("row_ror:4", "row_ror:8"):
        for e in range(4): a(f"v_add_f32_dpp v{ACC+e}, v{ACC+e}, v{ACC+e} {m} row_mask:0xf bank_mask:0xf")
    a(f"""
    s_mov_b32 exec_lo, 0x000f000f
    s_mov_b32 exec_hi, 0x000f000f
    ds_write_b128 v7, v[{ACC}:{ACC+3}] offset:{L_RED}
    s_mov_b64 exec, 1
    v_mov_b32 v4, 1
    s_waitcnt lgkmcnt(0)
    ds_add_rtn_u32 v8, v3, v4
    s_lshl_b32 s72, s29, 12
    s_lshl_b32 s73, s32, 7
    s_add_u32 s72, s72, s73
    s_add_u32 s72, s72, {GQ}
    s_lshl_b32 s73, s34, 7
    s_add_u32 s73, s73, {GF}
    s_cmp_eq_u32 s31, 0
    s_cselect_b32 s72, s72, s73
    s_cselect_b32 s73, 11, 14
    s_add_u32 s74, s26, s72
    s_addc_u32 s75, s27, 0
    s_waitcnt lgkmcnt(0)
    v_readfirstlane_b32 s72, v8
    s_mov_b64 exec, 0xffff
    s_cmp_eq_u32 s72, 3
    s_cbranch_scc0 L_h_nopub
    v_lshlrev_b32 v7, 4, v1
    ds_read_b128 v[40:43], v7 offset:{L_RED}
    ds_read_b128 v[44:47], v7 offset:{L_RED+256}
    ds_read_b128 v[48:51], v7 offset:{L_RED+512}
    ds_read_b128 v[52:55], v7 offset:{L_RED+768}
    v_lshrrev_b32 v8, 3, v1
    v_lshlrev_b32 v8, s73, v8
    v_and_b32 v7, 7, v1
    v_lshl_add_u32 v8, v7, 4, v8
    v_mov_b32 v57, s33
    v_mov_b32 v59, s33
    s_waitcnt lgkmcnt(0)
    v_pk_add_f32 v[40:41], v[40:41], v[44:45]
    v_pk_add_f32 v[42:43], v[42:43], v[46:47]
    v_pk_add_f32 v[48:49], v[48:49], v[52:53]
    v_pk_add_f32 v[50:51], v[50:51], v[54:55]
    v_pk_add_f32 v[40:41], v[40:41], v[48:49]
    v_pk_add_f32 v[42:43], v[42:43], v[50:51]
    v_cvt_pk_bf16_f32 v56, v40, v41
    v_cvt_pk_bf16_f32 v58, v42, v43
    global_store_dwordx4 v8, v[56:59], s[74:75] sc1
    """)
    a.label("L_h_nopub")
    a("s_mov_b64 exec, -1")
    stamp(0, 4)
    a(f"""
    s_cmp_eq_u32 s28, 0
    s_cbranch_scc0 L_h_b1
    s_lshl_b32 s72, s29, 12
    s_lshl_b32 s73, s31, 11
    s_add_u32 s72, s72, s73
    s_add_u32 s72, s72, {GQ}
    s_add_u32 s74, s26, s72
    s_addc_u32 s75, s27, 0
    v_lshlrev_b32 v7, 4, v1
    """)
    poll("q", ["global_load_dwordx4 v[40:43], v7, s[74:75] sc1", "global_load_dwordx4 v[44:47], v7, s[74:75] offset:1024 sc1"], [40, 44])
    a(f"""
    v_mov_b32 v41, v42
    v_mov_b32 v45, v46
    v_lshlrev_b32 v7, 3, v1
    ds_write_b64 v7, v[40:41] offset:{L_Q}
    ds_write_b64 v7, v[44:45] offset:{L_Q+512}
    s_waitcnt lgkmcnt(0)
    """)
    a.label("L_h_b1")
    stamp(0, 5)
    a("s_barrier   ; B1")
    a("s_barrier   ; B2")
    a(f"""
    s_lshr_b32 s35, s28, 1
    s_lshl_b32 s72, s35, 5
    v_mov_b32 v7, s72
    ds_read_b128 v[40:43], v7 offset:{L_ML}
    ds_read_b128 v[44:47], v7 offset:{L_ML+16}
    s_mov_b32 s73, {hx(C_SC)}
    s_waitcnt lgkmcnt(0)
    v_max3_f32 v48, v40, v42, v44
    v_max_f32 v48, v48, v46
    v_sub_f32 v40, v40, v48
    v_sub_f32 v42, v42, v48
    v_sub_f32 v44, v44, v48
    v_sub_f32 v46, v46, v48
    v_mul_f32 v40, s73, v40
    v_mul_f32 v42, s73, v42
    v_mul_f32 v44, s73, v44
    v_mul_f32 v46, s73, v46
    v_exp_f32 v20, v40
    v_exp_f32 v22, v42
    v_exp_f32 v24, v44
    v_exp_f32 v26, v46
    v_mul_f32 v50, v20, v41
    v_fma_f32 v50, v22, v43, v50
    v_fma_f32 v50, v24, v45, v50
    v_fma_f32 v50, v26, v47, v50
    v_mov_b32 v49, s33
    v_mov_b32 v51, s33
    s_bitcmp1_b32 s28, 0
    s_cbranch_scc1 L_h_odd
    s_lshl_b32 s72, s29, 1
    s_add_u32 s72, s72, s35
    s_lshl_b32 s72, s72, 1
    s_add_u32 s72, s72, s31
    s_lshl_b32 s72, s72, 4
    s_add_u32 s72, s72, s32
    s_lshl_b32 s72, s72, 4
    s_add_u32 s72, s72, {GML}
    v_mov_b32 v7, s72
    s_mov_b64 exec, 1
    global_store_dwordx4 v7, v[48:51], s[26:27] sc1
    s_mov_b64 exec, -1
    s_cmp_eq_u32 s28, 0
    s_cbranch_scc0 L_h_b3
    s_lshl_b32 s72, s29, 1
    s_lshr_b32 s74, s30, 4
    s_add_u32 s72, s72, s74
    s_lshl_b32 s72, s72, 9
    s_add_u32 s72, s72, {GML}
    v_and_b32 v8, 31, v1
    v_lshl_add_u32 v7, v8, 4, s72
    """)
    poll("ml", ["global_load_dwordx4 v[40:43], v7, s[26:27] sc1"], [40])
    a("v_mov_b32 v44, v40")
    allred16("v44", "v_max_f32")
    a("v_sub_f32 v40, v40, v44"); a("v_mul_f32 v40, s73, v40"); a("v_exp_f32 v40, v40"); a("v_mul_f32 v42, v40, v42")
    allred16("v42", "v_add_f32")
    a(f"""
    v_rcp_f32 v43, v42
    v_lshlrev_b32 v8, 2, v8
    v_fma_f32 v44, -v42, v43, 1.0
    v_fma_f32 v43, v44, v43, v43
    v_mul_f32 v40, v40, v43
    ds_write_b32 v8, v40 offset:{L_WP}
    s_waitcnt lgkmcnt(0)
    s_branch L_h_b3
    """)
    a.label("L_h_odd")
    a(f"""
    s_cmp_eq_u32 s28, 1
    s_cbranch_scc0 L_h_3
    s_lshr_b32 s72, s30, 1
    s_lshl_b32 s72, s72, 3
    s_add_u32 s72, s72, s29
    v_and_b32 v8, 31, v1
    v_lshlrev_b32 v9, 2, v8
    v_mov_b32 v40, 0
    s_cmp_lt_u32 s72, 112
    s_cbranch_scc0 L_h_hzero
    s_lshl_b32 s72, s72, 6
    s_add_u32 s72, s72, {GF}
    v_bfe_u32 v7, v1, 4, 1
    v_lshl_add_u32 v7, v7, 14, s72
    v_bfe_u32 v10, v1, 2, 2
    v_lshl_add_u32 v7, v10, 4, v7
    v_add_u32 v10, {56*128}, v7
    """)
    poll("ffn", ["global_load_dwordx4 v[40:43], v7, s[26:27] sc1", "global_load_dwordx4 v[44:47], v10, s[26:27] sc1"], [40, 44])
    K0 = 0.7978845608028654
    a(f"""
    v_and_b32 v10, 2, v1
    v_cmp_eq_u32 vcc, 0, v10
    v_and_b32 v10, 1, v1
    v_lshlrev_b32 v10, 4, v10
    v_cndmask_b32 v40, v42, v40, vcc
    v_cndmask_b32 v44, v46, v44, vcc
    v_lshrrev_b32 v40, v10, v40
    v_lshrrev_b32 v44, v10, v44
    v_lshlrev_b32 v40, 16, v40         ; gate
    v_lshlrev_b32 v44, 16, v44         ; up
    v_mul_f32 v41, v40, v40
    v_mul_f32 v41, v41, v40
    v_mul_f32 v41, {hx(f2u(0.044715))}, v41
    v_add_f32 v41, v41, v40
    v_mul_f32 v41, {hx(f2u(-2.0*K0*LOG2E))}, v41
    v_exp_f32 v41, v41
    v_add_f32 v41, 1.0, v41
    v_rcp_f32 v41, v41
    v_mul_f32 v40, v40, v41
    v_cvt_pk_bf16_f32 v40, v40, v40
    v_lshlrev_b32 v40, 16, v40
    v_mul_f32 v40, v40, v44
    v_cvt_pk_bf16_f32 v40, v40, v40
    """)
    a.label("L_h_hzero")
    a(f"""
    ds_write_b32 v9, v40 offset:{L_HB}
    s_waitcnt lgkmcnt(0)
    s_branch L_h_b3
    """)
    a.label("L_h_3")
    a(f"""
    s_cmp_eq_u32 s2, 0
    s_cbranch_scc0 L_h_b3
    v_lshrrev_b32 v7, 4, v1
    v_lshlrev_b32 v7, 12, v7
    v_and_b32 v8, 15, v1
    v_lshl_add_u32 v7, v8, 7, v7
    v_add_u32 v7, {GQ}, v7
    v_add_u32 v8, 0x4000, v7
    v_lshlrev_b32 v9, 7, v1
    v_add_u32 v9, {GF}, v9
    v_add_u32 v10, 0x2000, v9
    """)
    poll("ep", ["global_load_dwordx4 v[40:43], v7, s[26:27] sc1", "global_load_dwordx4 v[44:47], v8, s[26:27] sc1",
                "global_load_dwordx4 v[48:51], v9, s[26:27] sc1", "global_load_dwordx4 v[52:55], v10, s[26:27] sc1"], [40, 44, 48, 52])
    a(f"""
    v_mov_b32 v7, {WS_EPOCH}
    v_mov_b32 v8, s33
    s_mov_b64 exec, 1
    global_store_dword v7, v8, s[26:27] sc1
    s_mov_b64 exec, -1
    """)
    a.label("L_h_b3")
    a(f"""
    s_lshl_b32 s72, s28, 9
    v_lshl_add_u32 v7, v1, 3, s72
    s_lshl_b32 s72, s29, 17
    s_lshl_b32 s73, s28, 15
    s_add_u32 s72, s72, s73
    s_lshl_b32 s73, s31, 12
    s_add_u32 s72, s72, s73
    s_lshl_b32 s73, s32, 8
    s_add_u32 s72, s72, s73
    s_add_u32 s72, s72, {GO}
    v_lshrrev_b32 v8, 4, v1
    v_lshl_add_u32 v8, v8, 13, s72
    v_and_b32 v9, 15, v1
    v_lshl_add_u32 v8, v9, 4, v8
    v_mov_b32 v41, s33
    v_mov_b32 v43, s33
    """)
    stamp(0, 6)
    a("s_barrier   ; B3")
    for s in range(4): a(f"ds_read_b64 v[{44+2*s}:{45+2*s}], v7 offset:{L_OP+2048*s}")
    a(f"""
    s_lshr_b32 s72, s28, 1
    s_lshl_b32 s73, s72, 10
    s_and_b32 s74, s28, 1
    s_mul_i32 s75, s74, 448
    s_add_u32 s73, s73, s75
    v_lshl_add_u32 v10, v1, 3, s73
    s_lshl_b32 s72, s72, 1
    s_and_b32 s73, s30, 1
    s_add_u32 s72, s72, s73
    s_lshl_b32 s72, s72, 7
    s_lshl_b32 s73, s29, 4
    s_add_u32 s72, s72, s73
    s_lshr_b32 s73, s30, 1
    s_add_u32 s72, s72, s73
    s_mul_i32 s72, s72, 1792
    s_mul_i32 s74, s74, 896
    s_add_u32 s72, s72, s74
    s_add_u32 s72, s72, {GA}
    v_lshl_add_u32 v11, v1, 4, s72
    {lg(3)}
    v_pk_mul_f32 v[52:53], v[44:45], v[20:21] op_sel_hi:[1,0]
    {lg(2)}
    v_pk_fma_f32 v[52:53], v[46:47], v[22:23], v[52:53] op_sel_hi:[1,0,1]
    {lg(1)}
    v_pk_fma_f32 v[52:53], v[48:49], v[24:25], v[52:53] op_sel_hi:[1,0,1]
    s_waitcnt lgkmcnt(0)
    v_pk_fma_f32 v[52:53], v[50:51], v[26:27], v[52:53] op_sel_hi:[1,0,1]
    v_mov_b32 v40, v52
    v_mov_b32 v42, v53
    global_store_dwordx4 v8, v[40:43], s[26:27] sc1
    v_mov_b32 v57, s33
    v_mov_b32 v59, s33
    s_mov_b32 exec_hi, 0x00ffffff
    s_barrier   ; B4
    """)
    for s in range(4): a(f"ds_read_b64 v[{44+2*s}:{45+2*s}], v10 offset:{L_AP+2048*s}")
    a(f"""
    {lg(2)}
    v_pk_add_f32 v[44:45], v[44:45], v[46:47]
    s_waitcnt lgkmcnt(0)
    v_pk_add_f32 v[48:49], v[48:49], v[50:51]
    v_add_f32 v56, v44, v48
    v_add_f32 v58, v45, v49
    global_store_dwordx4 v11, v[56:59], s[26:27] sc1
    """)
    stamp(0, 7)
    a("s_branch L_fin")

    a.label("L_streamer2")
    M = 8; S = 12; O = 20; D = 28; QB = 36; T = 52
    WO = 192; WD = 208; AC = 216
    a(f"""
    v_and_b32 v6, 15, v1
    v_lshlrev_b32 v3, 9, v4
    v_lshl_add_u32 v3, v6, 4, v3
    v_bfe_u32 v7, v1, 3, 1
    v_lshlrev_b32 v7, 9, v7
    v_lshl_add_u32 v7, v4, 6, v7
    v_lshl_add_u32 v7, v5, 4, v7
    ; masks M0..M3
    v_and_b32 v{T}, 1, v1
    v_lshlrev_b32 v{T}, 4, v{T}
    v_mov_b32 v{T+1}, 0xffff
    v_lshlrev_b32 v{T}, v{T}, v{T+1}
    v_bfe_u32 v{T+1}, v1, 1, 2
    """)
    for r in range(4):
        a(f"v_cmp_eq_u32 vcc, {r}, v{T+1}"); a(f"v_cndmask_b32 v{M+r}, 0, v{T}, vcc")
    a(f"""
    s_mov_b32 s70, 0xf0f0f0f0
    s_mov_b32 s71, 0xf0f0f0f0
    s_lshr_b32 s72, s30, 1             ; rb
    s_and_b32 s73, s30, 1              ; ch
    s_mul_i32 s73, s73, 448
    s_lshl_b32 s74, s29, 9
    s_lshl_b32 s75, s72, 5
    s_add_u32 s74, s74, s75
    s_lshl_b32 s75, s28, 3
    s_add_u32 s74, s74, s75
    s_mul_i32 s74, s74, 896
    s_add_u32 s74, s74, s73
    v_mul_u32_u24 v{T}, 1792, v4
    v_lshl_add_u32 v{T}, v6, 4, v{T}
    v_add_u32 v{T+10}, s74, v{T}
    s_lshl_b32 s74, s72, 3
    s_add_u32 s74, s74, s29
    s_lshl_b32 s74, s74, 4
    s_lshl_b32 s75, s28, 2
    s_add_u32 s74, s74, s75
    s_mul_i32 s74, s74, 896
    s_add_u32 s74, s74, s73
    v_mul_u32_u24 v{T}, 896, v4
    v_lshl_add_u32 v{T}, v6, 4, v{T}
    v_add_u32 v{T+11}, s74, v{T}
    s_mov_b32 s44, s12
    s_mov_b32 s45, s13
    s_mov_b32 s46, {4096*896}
    s_mov_b32 s47, 0x20000
    s_mov_b32 s48, s20
    s_mov_b32 s49, s21
    s_mov_b32 s50, {1792*896}
    s_mov_b32 s51, 0x20000
    s_waitcnt lgkmcnt(0)
    """)
    tag()
    a("s_barrier   ; B1")
    stamp(1, 2)
    a(f"ds_read_b128 v[{T}:{T+3}], v7 offset:{L_Q}")
    a(f"ds_read_b128 v[{T+4}:{T+7}], v7 offset:{L_Q+256}")
    a(lg(1))
    for k in range(4): a(f"v_cndmask_b32 v{QB+k}, v{T+k}, 0, s[70:71]"); a(f"v_cndmask_b32 v{QB+8+k}, 0, v{T+k}, s[70:71]")
    a("s_waitcnt lgkmcnt(0)")
    for k in range(4): a(f"v_cndmask_b32 v{QB+4+k}, v{T+4+k}, 0, s[70:71]"); a(f"v_cndmask_b32 v{QB+12+k}, 0, v{T+4+k}, s[70:71]")
    def qk(t):
        d = D + 4*(t & 1)
        for j in range(4):
            r = KV + (t*4 + j)*4
            c = "0" if j == 0 else f"v[{d}:{d+3}]"
            a(f"v_mfma_f32_16x16x32_bf16 v[{d}:{d+3}], v[{r}:{r+3}], v[{QB+4*j}:{QB+4*j+3}], {c}")
    def red(t):
        d = D + 4*(t & 1)
        a(f"v_mov_b32_dpp v{T}, v{d} quad_perm:[0,0,0,0] row_mask:0xf bank_mask:0xf")
        a(f"v_mov_b32_dpp v{T+1}, v{d+2} quad_perm:[2,2,2,2] row_mask:0xf bank_mask:0xf")
        a(f"v_add_f32_dpp v{T}, v{d+1}, v{T} quad_perm:[1,1,1,1] row_mask:0xf bank_mask:0xf")
        a(f"v_add_f32_dpp v{T+1}, v{d+3}, v{T+1} quad_perm:[3,3,3,3] row_mask:0xf bank_mask:0xf")
        a(f"v_add_f32 v{S+t}, v{T}, v{T+1}")
    vq = 0
    def vgroup():
        nonlocal vq
        for j in range(4): vload(vq*2 + (j >> 1), j & 1)
        vq += 1
    for t in range(8):
        a(f"s_waitcnt vmcnt({4*(7-t) + 4*vq})")
        qk(t)
        if t > 0: red(t-1)
        if t >= lag - 1 and t < 7: vgroup()
    red(7)
    stamp(1, 3)
    for k in range(4): a(f"v_cvt_pk_bf16_f32 v{T+k}, v{S+2*k}, v{S+2*k+1}")
    for k in range(4): a(f"v_lshlrev_b32 v{S+2*k}, 16, v{T+k}"); a(f"v_and_b32 v{S+2*k+1}, 0xffff0000, v{T+k}")
    a(f"""
    v_max3_f32 v{T}, v{S}, v{S+1}, v{S+2}
    v_max3_f32 v{T+2}, v{S+3}, v{S+4}, v{S+5}
    v_max3_f32 v{T}, v{T}, v{S+6}, v{S+7}
    v_max_f32 v{T}, v{T}, v{T+2}
    v_max_f32_dpp v{T}, v{T}, v{T} row_half_mirror row_mask:0xf bank_mask:0xf
    s_mov_b32 s72, {hx(C_SC)}
    """)
    swapred([f"v{T}"], [f"v{T+2}"], "v_max_f32", 16); swapred([f"v{T}"], [f"v{T+2}"], "v_max_f32", 32)
    for t in range(8): a(f"v_sub_f32 v{S+t}, v{S+t}, v{T}")
    for t in range(8): a(f"v_mul_f32 v{S+t}, s72, v{S+t}")
    for t in range(8): a(f"v_exp_f32 v{S+t}, v{S+t}")
    a(f"""
    v_add_f32 v{T+1}, v{S}, v{S+1}
    v_add_f32 v{T+2}, v{S+2}, v{S+3}
    v_add_f32 v{T+3}, v{S+4}, v{S+5}
    v_add_f32 v{T+4}, v{S+6}, v{S+7}
    v_add_f32 v{T+1}, v{T+1}, v{T+2}
    v_add_f32 v{T+3}, v{T+3}, v{T+4}
    v_add_f32 v{T+1}, v{T+1}, v{T+3}
    v_add_f32_dpp v{T+1}, v{T+1}, v{T+1} row_half_mirror row_mask:0xf bank_mask:0xf
    """)
    swapred([f"v{T+1}"], [f"v{T+2}"], "v_add_f32", 16); swapred([f"v{T+1}"], [f"v{T+2}"], "v_add_f32", 32)
    a(f"""
    v_bfe_u32 v7, v1, 3, 1
    v_lshlrev_b32 v7, 5, v7
    s_lshl_b32 s72, s28, 3
    v_add_u32 v7, s72, v7
    s_mov_b64 exec, 0x101
    ds_write_b64 v7, v[{T}:{T+1}] offset:{L_ML}
    s_mov_b64 exec, -1
    s_waitcnt lgkmcnt(0)
    s_barrier   ; B2
    """)
    while vq < 8: vgroup()
    a(f"buffer_load_dwordx4 v[{WD}:{WD+3}], v{T+11}, s[48:51], 0 offen {oflags}")
    for m in range(2): a(f"buffer_load_dwordx4 v[{WO+8*m}:{WO+8*m+3}], v{T+10}, s[44:47], 0 offen offset:{896*m} {oflags}")
    a("s_mov_b32 exec_lo, 0x0fff0fff"); a("s_mov_b32 exec_hi, 0x0fff0fff")
    a(f"buffer_load_dwordx4 v[{WD+4}:{WD+7}], v{T+11}, s[48:51], 0 offen offset:256 {oflags}")
    for m in range(2): a(f"buffer_load_dwordx4 v[{WO+8*m+4}:{WO+8*m+7}], v{T+10}, s[44:47], 0 offen offset:{896*m+256} {oflags}")
    a("s_mov_b64 exec, -1")
    stamp(1, 4)
    for t in range(8): a(f"v_cvt_pk_bf16_f32 v{S+t}, v{S+t}, v{S+t}")
    a(f"""
    v_lshrrev_b32 v7, 1, v4
    v_lshlrev_b32 v7, 10, v7
    v_lshl_add_u32 v7, v6, 5, v7
    v_and_b32 v{T}, 1, v4
    v_lshl_add_u32 v7, v{T}, 4, v7         ; (G>>1)*1024 + j*32 + (G&1)*16
    s_lshl_b32 s72, s28, 11
    v_add_u32 v7, s72, v7
    s_lshl_b32 s72, s29, 17
    s_lshr_b32 s73, s30, 1
    s_lshl_b32 s73, s73, 13
    s_add_u32 s72, s72, s73
    s_lshl_b32 s73, s28, 6
    s_add_u32 s72, s72, s73
    s_add_u32 s72, s72, {GO}
    v_lshrrev_b32 v{T+8}, 2, v1
    v_lshlrev_b32 v{T+9}, 2, v{T+8}
    v_lshl_add_u32 v{T+8}, v{T+8}, 8, s72
    v_lshl_add_u32 v{T+8}, v5, 4, v{T+8}
    v_add_u32 v2, 0x1000, v{T+8}
    v_bfe_u32 v3, v1, 3, 1
    v_lshl_add_u32 v3, v3, 4, v4
    s_lshl_b32 s72, s28, 4
    v_lshl_add_u32 v3, v3, 2, s72
    """)
    def pv_prep(t):
        A = QB + 8*(t & 1)
        a(f"v_mov_b32_dpp v{T}, v{S+t} row_half_mirror row_mask:0xf bank_mask:0xf")
        for r in range(2): a(f"v_and_b32 v{A+r}, v{S+t}, v{M+r}")
        for r in range(2, 4): a(f"v_and_b32 v{A+4+r}, v{S+t}, v{M+r}")
        for r in range(2, 4): a(f"v_and_b32 v{A+r}, v{T}, v{M+r}")
        for r in range(2): a(f"v_and_b32 v{A+4+r}, v{T}, v{M+r}")
    pv_prep(0)
    for t in range(8):
        if t < 7: pv_prep(t+1)
        A = QB + 8*(t & 1)
        a(f"s_waitcnt vmcnt({6 + 4*(7-t)})")
        for j in range(4):
            r = KV + (t*4 + j)*4; hf = j & 1; sg = j >> 1
            c = "0" if (t == 0 and sg == 0) else f"v[{O+4*hf}:{O+4*hf+3}]"
            a(f"v_mfma_f32_16x16x32_bf16 v[{O+4*hf}:{O+4*hf+3}], v[{A+4*sg}:{A+4*sg+3}], v[{r}:{r+3}], {c}")
    stamp(1, 5)
    a(f"""
    ds_write_b128 v7, v[{O}:{O+3}] offset:{L_OP}
    ds_write_b128 v7, v[{O+4}:{O+7}] offset:{L_OP+512}
    s_waitcnt lgkmcnt(0)
    s_barrier   ; B3
    ds_read_b32 v{T}, v3 offset:{L_HB}
    ds_read_b32 v{T+1}, v{T+9} offset:{L_WP}
    ds_read_b32 v{T+2}, v{T+9} offset:{L_WP+64}
    s_mov_b32 s72, 0x01000100
    s_mov_b32 s73, 0x03020302
    s_mov_b32 s70, 0xff00ff00
    s_mov_b32 s71, 0xff00ff00
    {lg(2)}
    v_perm_b32 v{T}, v{T}, v{T}, s72
    """)
    for r in range(4): a(f"v_and_b32 v{QB+r}, v{T}, v{M+r}")
    a("s_waitcnt vmcnt(2)")
    a(f"v_mfma_f32_16x16x32_bf16 v[{AC}:{AC+3}], v[{QB}:{QB+3}], v[{WD}:{WD+3}], 0")
    a(f"v_mfma_f32_16x16x32_bf16 v[{AC+4}:{AC+7}], v[{QB}:{QB+3}], v[{WD+4}:{WD+7}], 0")
    poll("o", [f"global_load_dwordx4 v[64:67], v{T+8}, s[26:27] sc1", "global_load_dwordx4 v[68:71], v2, s[26:27] sc1"], [64, 68])
    stamp(1, 6)
    a(f"""
    s_waitcnt lgkmcnt(0)
    v_mul_f32 v64, v64, v{T+1}
    v_mul_f32 v66, v66, v{T+1}
    v_mul_f32 v68, v68, v{T+2}
    v_mul_f32 v70, v70, v{T+2}
    """)
    vs = ["v64", "v66", "v68", "v70"]
    a("v_permlane32_swap_b32 v64, v68"); a("v_permlane32_swap_b32 v66, v70")
    a("v_add_f32 v64, v64, v68"); a("v_add_f32 v66, v66, v70")
    swapred(["v64", "v66"], ["v65", "v67"], "v_add_f32", 16)
    for m in ("row_ror:4", "row_ror:8"):
        for v in ("v64", "v66"): a(f"v_add_f32_dpp {v}, {v}, {v} {m} row_mask:0xf bank_mask:0xf")
    a("v_cvt_pk_bf16_f32 v64, v64, v66")
    a("v_mov_b32 v65, v64")
    a("v_permlane32_swap_b32 v64, v65")
    a("v_cndmask_b32 v64, v64, v65, s[70:71]")
    for g in range(4): a(f"v_mov_b32_dpp v66, v64 quad_perm:[{g},{g},{g},{g}] row_mask:{hex(1 << g)} bank_mask:0xf")
    a("v_perm_b32 v67, v66, v66, s72"); a("v_perm_b32 v68, v66, v66, s73")
    for r in range(4): a(f"v_and_b32 v{QB+r}, v67, v{M+r}")
    for r in range(4): a(f"v_and_b32 v{QB+4+r}, v68, v{M+r}")
    for m in range(2):
        for cb in range(2):
            a(f"v_mfma_f32_16x16x32_bf16 v[{AC+4*cb}:{AC+4*cb+3}], v[{QB+4*m}:{QB+4*m+3}], v[{WO+8*m+4*cb}:{WO+8*m+4*cb+3}], v[{AC+4*cb}:{AC+4*cb+3}]")
    a(f"""
    ds_write_b128 v7, v[{AC}:{AC+3}] offset:{L_AP}
    ds_write_b128 v7, v[{AC+4}:{AC+7}] offset:{L_AP+512}
    s_waitcnt lgkmcnt(0)
    s_barrier   ; B4
    s_cmp_eq_u32 s28, 0
    s_cbranch_scc0 L_s_fin
    s_cmp_lt_u32 s32, 7
    s_cbranch_scc0 L_s_fin
    s_lshl_b32 s72, s32, 3
    s_add_u32 s72, s72, s29            ; cc
    s_cmp_ge_u32 s72, 28
    s_cselect_b32 s73, 1, 0
    s_mul_i32 s74, s73, 28
    s_sub_u32 s74, s72, s74
    s_lshl_b32 s74, s74, 6
    s_lshl_b32 s75, s31, 1
    s_add_u32 s75, s75, s73
    s_mul_i32 s75, s75, {128*1792}
    s_add_u32 s74, s74, s75
    s_add_u32 s74, s74, {GA}
    s_add_u32 s36, s26, s74
    s_addc_u32 s37, s27, 0
    s_mov_b32 s38, {128*1792}
    v_lshrrev_b32 v2, 2, v1
    v_mul_u32_u24 v2, 1792, v2
    v_lshl_add_u32 v2, v5, 4, v2
    s_mul_i32 s74, s31, 896
    s_lshl_b32 s72, s72, 4
    s_add_u32 s72, s72, s74
    v_lshl_add_u32 v3, v5, 2, s72
    global_load_dword v6, v3, s[4:5]
    """)
    for k in range(1, 8): a(f"s_mov_b32 s{52+k}, {k*16*1792}")
    poll("a", [f"buffer_load_dwordx4 v[{64+4*k}:{67+4*k}], v2, s[36:39], {'0' if k == 0 else 's%d' % (52+k)} offen sc1" for k in range(8)], [64+4*k for k in range(8)])
    for k in range(0, 8, 2): a(f"v_add_f32 v{64+4*k}, v{64+4*k}, v{68+4*k}"); a(f"v_add_f32 v{66+4*k}, v{66+4*k}, v{70+4*k}")
    for k in range(0, 8, 4): a(f"v_add_f32 v{64+4*k}, v{64+4*k}, v{72+4*k}"); a(f"v_add_f32 v{66+4*k}, v{66+4*k}, v{74+4*k}")
    a("v_add_f32 v64, v64, v80"); a("v_add_f32 v66, v66, v82")
    swapred(["v64", "v66"], ["v65", "v67"], "v_add_f32", 32)
    swapred(["v64", "v66"], ["v65", "v67"], "v_add_f32", 16)
    a("v_lshlrev_b32 v68, 16, v6"); a("v_and_b32 v69, 0xffff0000, v6")
    for m in ("row_ror:4", "row_ror:8"):
        for v in ("v64", "v66"): a(f"v_add_f32_dpp {v}, {v}, {v} {m} row_mask:0xf bank_mask:0xf")
    a("""
    v_add_f32 v64, v64, v68
    v_add_f32 v66, v66, v69
    v_cvt_pk_bf16_f32 v64, v64, v66
    s_mov_b64 exec, 15
    global_store_dword v3, v64, s[22:23]
    """)
    if diag:
        a(f"""
        s_cmp_eq_u32 s2, 0
        s_cbranch_scc0 L_s_fin
        s_waitcnt vmcnt(0)
        s_memrealtime s[96:97]
        s_waitcnt lgkmcnt(0)
        s_sub_u32 s72, s96, s98
        v_mov_b32 v8, s72
        v_mov_b32 v9, 0
        s_mov_b64 exec, 1
        global_store_dword v9, v8, s[24:25]
        """)
    a.label("L_s_fin")
    stamp(1, 7)
    a("s_add_u32 s28, s28, 4")
    a.label("L_fin")
    if stamps:
        a(f"""
        s_lshl_b32 s72, s2, 3
        s_add_u32 s72, s72, s28
        s_lshl_b32 s72, s72, 6
        s_add_u32 s72, s72, {TS}
        s_add_u32 s26, s26, s72
        s_addc_u32 s27, s27, 0
        s_waitcnt lgkmcnt(0)
        s_mov_b64 exec, 1
        """)
        for j in range(16): a(f"v_mov_b32 v{8+j}, s{80+j}")
        a("v_mov_b32 v2, 0")
        for j in range(4): a(f"global_store_dwordx4 v2, v[{8+4*j}:{11+4*j}], s[26:27] offset:{16*j}")
    a.label("L_end")
    a("s_endpgm")
    hdr = ["parallel_sum(sliding-window cached attention, GeGLU FFN) decode step, one persistent launch.",
           "256 workgroups (one per CU) x 8 waves: waves 0-3 helpers, waves 4-7 K/V streamers.",
           "Generated by the author's own generator script."]
    return header(hdr, 256, 512, LDS_SIZE) + a.text() + footer(256, 102, 256)

if __name__ == "__main__":
    open("k1.s", "w").write(gen())
    open("k1_ts.s", "w").write(gen(stamps=True))
    open("k1_diag.s", "w").write(gen(diag=50))
    open("k1_plain.s", "w").write(gen(kflags="", wflags="", oflags=""))
    open("k1_nowarm.s", "w").write(gen(warm=False))
```
